```python
import torch

def _softmax(x, axis=-1):
    return torch.softmax(x, dim=axis)
def _gelu(x):
    return torch.nn.functional.gelu(x, approximate="tanh")
def _silu(x):
    return torch.nn.functional.silu(x)
def _sigmoid(x):
    return torch.sigmoid(x)
def _layernorm(x, axis=-1, eps=1e-5):
    m = x.mean(dim=axis, keepdim=True)
    v = x.var(dim=axis, keepdim=True, unbiased=False)
    return (x - m) / torch.sqrt(v + eps)
def _scatter_add(tgt, idx, src, axis=0):
    return tgt.clone().index_add_(axis, idx, src)
def _segment_sum(src, seg, n):
    out = torch.zeros((n,) + src.shape[1:], dtype=src.dtype)
    return out.index_add_(0, seg, src)
def _pad(x, pw):
    flat = tuple(v for pair in reversed(pw) for v in pair)
    return torch.nn.functional.pad(x, flat)

kernel_name = 'sequential_preLN__grouped_kv_mqa__moe_arch_mod__prompt'

def setup_inputs():

    _w = (lambda a: (lambda t: t.to(torch.bfloat16) if t.is_floating_point() else t)(torch.as_tensor(a)))
    def _A_setup():
        B, S, D, H = 1, 2048, 448, 16
        Dh = D // H
        return {
            "x": _w((lambda *s: torch.randn(*s, dtype=torch.bfloat16) * 0.05)(B, S, D)),
            "wq": _w((lambda *s: torch.randn(*s, dtype=torch.bfloat16) * 0.05)(D, H * Dh)),
            "wk": _w((lambda *s: torch.randn(*s, dtype=torch.bfloat16) * 0.05)(D, Dh)),
            "wv": _w((lambda *s: torch.randn(*s, dtype=torch.bfloat16) * 0.05)(D, Dh)),
            "wo": _w((lambda *s: torch.randn(*s, dtype=torch.bfloat16) * 0.05)(H * Dh, D)),
        }
    _A_in = _A_setup()

    def _B_setup():
        B, S, D, F, C = 1, 2048, 448, 1792, 2
        return {
            "x": _w((lambda *s: torch.randn(*s, dtype=torch.bfloat16) * 0.05)(B, S, D)),
            "w_r": _w((lambda *s: torch.randn(*s, dtype=torch.bfloat16) * 0.05)(D)),
            "w_gate": _w((lambda *s: torch.randn(*s, dtype=torch.bfloat16) * 0.05)(D, F)),
            "w_up": _w((lambda *s: torch.randn(*s, dtype=torch.bfloat16) * 0.05)(D, F)),
            "w_down": _w((lambda *s: torch.randn(*s, dtype=torch.bfloat16) * 0.05)(F, D)),
        }
    _B_in = _B_setup()

    return {
        "A_x": _A_in["x"],
        "A_wq": _A_in["wq"],
        "A_wk": _A_in["wk"],
        "A_wv": _A_in["wv"],
        "A_wo": _A_in["wo"],
        "B_x": _B_in["x"],
        "B_w_r": _B_in["w_r"],
        "B_w_gate": _B_in["w_gate"],
        "B_w_up": _B_in["w_up"],
        "B_w_down": _B_in["w_down"],
    }

def reference(A_x, A_wq, A_wk, A_wv, A_wo, B_x, B_w_r, B_w_gate, B_w_up, B_w_down):
    def _A_ref(x, wq, wk, wv, wo):
        B, S, D = x.shape
        H = 16
        Dh = D // H
        q = (lambda x, *d: x.permute(*d))((x @ wq).reshape(B, S, H, Dh), 0, 2, 1, 3)
        k = x @ wk
        v = x @ wv
        scores = torch.einsum("bhqd,bkd->bhqk", q, k) * (Dh ** -0.5)
        p = _softmax(scores, axis=-1)
        o = torch.einsum("bhqk,bkd->bhqd", p, v)
        return (lambda x, *d: x.permute(*d))(o, 0, 2, 1, 3).reshape(B, S, H * Dh) @ wo

    def _B_ref(x, w_r, w_gate, w_up, w_down):
        B, S, D = x.shape
        C = 2
        r = x @ w_r
        idx = torch.argsort(-r, axis=-1)[:, :C]
        idx_e = (lambda x, n, axis: torch.repeat_interleave(x, n, dim=axis))(idx.reshape(B, C, 1), D, axis=2)
        x_sel = (lambda x, i, axis: torch.take_along_dim(x, i, dim=axis))(x, idx_e, axis=1)
        g = _silu(x_sel @ w_gate)
        u = x_sel @ w_up
        y = (g * u) @ w_down
        r_sel = _sigmoid((lambda x, i, axis: torch.take_along_dim(x, i, dim=axis))(r, idx, axis=1))
        y = y * r_sel.reshape(B, C, 1)
        b_off = (torch.arange(B) * S).reshape(B, 1)
        flat_idx = (idx + b_off).reshape(B * C)
        zero = (x * 0.0).reshape(B * S, D)
        upd = _scatter_add(zero, flat_idx, y.reshape(B * C, D), axis=0)
        return x + upd.reshape(B, S, D)

    x = A_x
    h = x + _A_ref(_layernorm(x, axis=-1), A_wq, A_wk, A_wv, A_wo)
    h2 = h + _B_ref(_layernorm(h, axis=-1), B_w_r, B_w_gate, B_w_up, B_w_down)
    return h2
```

```python
import re

TRANS = ('v_exp_f32', 'v_log_f32', 'v_rcp_f32', 'v_rsq_f32', 'v_sqrt_f32', 'v_sin_f32', 'v_cos_f32',
         'v_rcp_iflag_f32', 'v_exp_f16', 'v_rcp_f16')
MFMA_PASSES = {'v_mfma_f32_32x32x16_bf16': 8, 'v_mfma_f32_16x16x32_bf16': 4,
               'v_mfma_f32_32x32x16_f16': 8, 'v_mfma_f32_16x16x32_f16': 4}

_reg_re = re.compile(r'^(-|abs\()?([vas])(\d+|\[(\d+):(\d+)\])\)?$')


def parse_reg(tok):
    tok = tok.strip()
    if tok in ('vcc',):
        return [('s', 106), ('s', 107)]
    if tok == 'vcc_lo':
        return [('s', 106)]
    if tok == 'vcc_hi':
        return [('s', 107)]
    if tok == 'exec':
        return [('s', 126), ('s', 127)]
    if tok == 'exec_lo':
        return [('s', 126)]
    if tok == 'exec_hi':
        return [('s', 127)]
    if tok == 'm0':
        return [('s', 124)]
    m = _reg_re.match(tok)
    if not m:
        return []
    k = m.group(2)
    if m.group(4) is not None:
        return [(k, i) for i in range(int(m.group(4)), int(m.group(5)) + 1)]
    return [(k, int(m.group(3)))]


def split_ops(s):
    out, depth, cur = [], 0, ''
    for ch in s:
        if ch in '[(':
            depth += 1
        if ch in '])':
            depth -= 1
        if ch == ',' and depth == 0:
            out.append(cur.strip())
            cur = ''
        else:
            cur += ch
    if cur.strip():
        out.append(cur.strip())
    return out


class Ins:
    def __init__(self, text):
        self.text = text
        t = text.split(';')[0].strip()
        parts = t.split(None, 1)
        self.op = parts[0]
        rest = parts[1] if len(parts) > 1 else ''
        ops = split_ops(rest)
        self.mods = ''
        if ops:
            lp = ops[-1].split(None, 1)
            if len(lp) > 1:
                ops[-1] = lp[0]
                self.mods = lp[1]
        self.ops = ops
        op = self.op
        self.is_label = False
        self.is_mfma = op in MFMA_PASSES
        self.passes = MFMA_PASSES.get(op, 0)
        self.is_valu = op.startswith('v_') and not self.is_mfma
        self.is_trans = op.replace('_e32', '').replace('_e64', '') in TRANS
        self.is_dot = op.startswith('v_dot')
        self.is_dpp = '_dpp' in op
        self.is_permlane = op.startswith('v_permlane')
        self.is_readlane = op.startswith('v_readlane') or op.startswith('v_readfirstlane') or op.startswith('v_writelane')
        self.is_vmem = op.startswith('buffer_') or op.startswith('global_') or op.startswith('flat_')
        self.is_ds = op.startswith('ds_')
        self.is_salu = op.startswith('s_')
        self.is_branch = op.startswith('s_cbranch') or op == 's_branch'
        self.is_lds_dma = self.is_vmem and ('lds' in op or re.search(r'\blds\b', self.mods) is not None)
        self.is_store = self.is_vmem and ('store' in op or 'atomic' in op)
        self.wide_store = self.is_vmem and 'store' in op and ('x4' in op or 'x3' in op)
        self.nop_states = 1
        if op == 's_nop':
            self.nop_states = int(ops[0], 0) + 1
        R = [parse_reg(o) for o in ops]
        dst, src = [], []
        self.srcC = []
        self.srcAB = []
        self.store_data = []
        if self.is_mfma:
            dst = R[0]
            self.srcAB = R[1] + R[2]
            self.srcC = R[3]
            src = R[1] + R[2] + R[3]
        elif self.is_permlane and 'swap' in op:
            dst = R[0] + R[1]
            src = R[0] + R[1]
        elif op.startswith('v_cmp'):
            dst = R[0]
            src = sum(R[1:], [])
        elif op.startswith('v_add_co') or op.startswith('v_sub_co') or op.startswith('v_addc_co') or op.startswith('v_subb_co') or op.startswith('v_mad_u64') or op.startswith('v_div_scale'):
            dst = R[0] + R[1]
            src = sum(R[2:], [])
        elif self.is_valu:
            dst = R[0]
            src = sum(R[1:], [])
            if op.startswith('v_fmac') or op.startswith('v_pk_fmac') or op.startswith('v_dot2c') or op.startswith('v_writelane') or self.is_dpp or 'sdwa' in op:
                src = src + R[0]
            if op.startswith('v_cndmask') and len(ops) == 3:
                src = src + parse_reg('vcc')
        elif self.is_vmem:
            if self.is_lds_dma:
                src = sum(R, [])
            elif 'store' in op:
                src = sum(R, [])
                self.store_data = R[0] if op.startswith('buffer_') else R[1]
            elif 'atomic' in op:
                if 'sc0' in self.mods:
                    if op.startswith('buffer_'):
                        dst = R[0]; src = sum(R, [])
                    else:
                        dst = R[0]; src = sum(R[1:], [])
                else:
                    src = sum(R, [])
            elif op in ('buffer_wbl2', 'buffer_inv'):
                pass
            else:
                dst = R[0]
                src = sum(R[1:], [])
        elif self.is_ds:
            if op.startswith('ds_write') or op.startswith('ds_add') or op.startswith('ds_max'):
                src = sum(R, [])
            else:
                dst = R[0]
                src = sum(R[1:], [])
        elif self.is_salu:
            if op.startswith('s_cmp') or self.is_branch or op in ('s_nop', 's_waitcnt', 's_barrier', 's_endpgm', 's_sleep', 's_setprio'):
                src = sum(R, [])
            elif 'saveexec' in op:
                dst = R[0] + parse_reg('exec')
                src = sum(R[1:], [])
            else:
                dst = R[0] if R else []
                src = sum(R[1:], [])
        self.dst = set(dst)
        self.src = set(src)
        self.dst_list = dst
        self.srcC_set = set(self.srcC)


def vec(regs):
    return set(r for r in regs if r[0] in 'va')


def sc(regs):
    return set(r for r in regs if r[0] == 's')


def required(p, c):
    need = 0
    T_D_OTHER = {2: 5, 4: 8, 8: 12, 16: 20}
    T_D_COVL = {2: 4, 4: 6, 8: 10, 16: 18}
    T_WAR_C = {2: 1, 4: 3, 8: 7, 16: 15}
    if p.is_valu:
        vd = vec(p.dst)
        sd = sc(p.dst)
        if c.is_mfma and vd & c.src:
            need = max(need, 2 if not p.is_dot else 3)
        if p.is_trans and c.is_valu and not c.is_trans and vd & c.src:
            need = max(need, 1)
        if p.is_trans and (c.is_vmem or c.is_ds) and vd & c.src:
            need = max(need, 1)
        if c.is_dpp and vd & c.src:
            need = max(need, 2)
        if c.is_permlane and vd & c.src:
            need = max(need, 2)
        if c.is_readlane and vd & c.src:
            need = max(need, 1)
        if sd:
            if c.is_valu and sd & c.src:
                need = max(need, 4 if c.is_readlane or c.op.startswith('v_div_fmas') else 2)
            if c.is_vmem and sd & c.src:
                need = max(need, 5)
            if c.is_salu and sd & c.src:
                need = max(need, 1)
        if p.is_dot:
            if vd & (c.src | c.dst):
                same_c = (c.op == p.op and not (vd & set(sum([parse_reg(o) for o in c.ops[1:3]], []))))
                if not same_c:
                    need = max(need, 3)
        if 'sdwa' in p.op and c.is_valu and vd & (c.src | c.dst):
            need = max(need, 1)
    if p.is_mfma:
        d = p.dst
        if c.is_mfma:
            if d & set(c.srcAB):
                need = max(need, T_D_OTHER[p.passes])
            if d & c.srcC_set:
                if c.srcC == p.dst_list and c.passes == p.passes:
                    need = max(need, 2 if p.passes == 2 else 0)
                else:
                    need = max(need, T_D_COVL[p.passes])
            elif d & c.dst:
                need = max(need, T_D_COVL[p.passes])
        elif c.is_valu or c.is_vmem or c.is_ds:
            if d & (c.src | c.dst):
                need = max(need, T_D_OTHER[p.passes])
        if c.is_valu and p.srcC_set & c.dst:
            need = max(need, T_WAR_C[p.passes])
    if p.wide_store and set(p.store_data) & c.dst:
        need = max(need, 2)
    if p.is_salu and ('s', 124) in p.dst and (c.is_lds_dma or c.op.startswith('s_movrel')):
        need = max(need, 1)
    return need


WINDOW = 24


class Asm:
    def __init__(self):
        self.items = []

    def __call__(self, text):
        for line in text.strip('\n').split('\n'):
            s = line.strip()
            if not s or s.startswith(';') or s.startswith('//'):
                if s:
                    self.items.append(('raw', '    ' + s))
                continue
            if s.endswith(':') and ' ' not in s:
                self.items.append(('label', s[:-1]))
            elif s.startswith('.'):
                self.items.append(('raw', s))
            else:
                self.items.append(Ins(s))

    def raw(self, text):
        self.items.append(('raw', text))

    def _hist_need(self, hist, c):
        dist = 0
        extra = 0
        for p in reversed(hist):
            r = required(p, c)
            if r > dist:
                extra = max(extra, r - dist)
            dist += p.nop_states
            if dist >= WINDOW:
                break
        return extra

    def finalize(self):
        out = []
        hist = []
        for it in self.items:
            if isinstance(it, Ins):
                e = self._hist_need(hist, it)
                while e > 0:
                    k = min(e, 16)
                    n = Ins('s_nop %d' % (k - 1))
                    out.append(n)
                    hist.append(n)
                    e -= k
                out.append(it)
                hist.append(it)
                if it.op in ('s_endpgm', 's_branch'):
                    hist = []
                hist = hist[-WINDOW:]
            else:
                out.append(it)
        labels = {}
        for i, it in enumerate(out):
            if isinstance(it, tuple) and it[0] == 'label':
                labels[it[1]] = i
        inserts = {}
        for i, it in enumerate(out):
            if isinstance(it, Ins) and it.is_branch:
                tgt = labels[it.ops[0]]
                before = [x for x in out[max(0, i - 3 * WINDOW):i + 1] if isinstance(x, Ins)][-WINDOW:]
                after = []
                for x in out[tgt:tgt + 4 * WINDOW]:
                    if isinstance(x, Ins):
                        after.append(x)
                        if x.op in ('s_endpgm', 's_branch') or len(after) >= WINDOW:
                            break
                extra = 0
                h = list(before)
                for c in after:
                    dist = 0
                    for idx in range(len(h) - 1, -1, -1):
                        p = h[idx]
                        if idx < len(before):
                            r = required(p, c)
                            if r > dist:
                                extra = max(extra, r - dist)
                        dist += p.nop_states
                        if dist >= WINDOW:
                            break
                    h.append(c)
                if extra:
                    inserts[i] = extra
        res = []
        for i, it in enumerate(out):
            if i in inserts:
                e = inserts[i]
                while e > 0:
                    k = min(e, 16)
                    res.append('    s_nop %d' % (k - 1))
                    e -= k
            if isinstance(it, Ins):
                res.append('    ' + it.text)
            elif it[0] == 'label':
                res.append(it[1] + ':')
            else:
                res.append(it[1])
        return '\n'.join(res) + '\n'
```

```python
import math

WS_Q = 0x000000
WS_KV = 0x200000
WS_KMAX = 0x240000
WS_QMAX = 0x241000
WS_WOF = 0x250000
WS_KEY = 0x2C0000
WS_YACC = 0x2C1000
WS_CROW = 0x400000

QSCALE = math.log2(math.e) / math.sqrt(28.0)


def f32bits(x):
    import struct
    return '0x%08x' % struct.unpack('<I', struct.pack('<f', x))[0]


def vr(base, n=1):
    return 'v%d' % base if n == 1 else 'v[%d:%d]' % (base, base + n - 1)


def ar(base, n=1):
    return 'a%d' % base if n == 1 else 'a[%d:%d]' % (base, base + n - 1)


def sr(base, n=1):
    return 's%d' % base if n == 1 else 's[%d:%d]' % (base, base + n - 1)


class VmTracker:
    def __init__(self, a):
        self.a = a
        self.n = 0
        self.done = 0

    def issue(self, text):
        self.a(text)
        self.n += 1
        return self.n - 1

    def wait(self, idx):
        if idx < self.done:
            return
        cnt = self.n - 1 - idx
        assert cnt >= 0
        if cnt > 63:
            cnt = 63
            raise AssertionError('vmcnt overflow')
        self.a('s_waitcnt vmcnt(%d)' % cnt)
        self.done = idx + 1

    def wait_all(self):
        self.a('s_waitcnt vmcnt(0)')
        self.done = self.n


def allreduce16(a, op, v, tmp=None):
    for r in (8, 4, 2, 1):
        a('%s_dpp %s, %s, %s row_ror:%d row_mask:0xf bank_mask:0xf' % (op, v, v, v, r))


def xreduce16(a, op, v, tmp):
    a('v_mov_b32 %s, %s' % (tmp, v))
    a('v_permlane16_swap_b32 %s, %s' % (v, tmp))
    a('%s %s, %s, %s' % (op, v, v, tmp))


def xreduce32(a, op, v, tmp):
    a('v_mov_b32 %s, %s' % (tmp, v))
    a('v_permlane32_swap_b32 %s, %s' % (v, tmp))
    a('%s %s, %s, %s' % (op, v, v, tmp))


def kdesc(name, nvgpr, accum, nsgpr=102):
    return '''.p2align 6
.amdhsa_kernel %s
  .amdhsa_next_free_vgpr %d
  .amdhsa_next_free_sgpr %d
  .amdhsa_accum_offset %d
  .amdhsa_group_segment_fixed_size 0
  .amdhsa_kernarg_size 104
  .amdhsa_user_sgpr_count 2
  .amdhsa_user_sgpr_kernarg_segment_ptr 1
  .amdhsa_system_sgpr_workgroup_id_x 1
.end_amdhsa_kernel
''' % (name, nvgpr, nsgpr, accum)
```

```python
from common import *

K1_GRID = 281
K1_LDS = 51200
X0, W0, ACC0, F0 = 20, 48, 160, 224
L_SUM, L_SQ = 49152, 50176


def k1(a):
    for cq in range(112):
        assert (cq * 147) >> 10 == cq // 7
    vm = VmTracker(a)
    a('''
k1_kernel:
    s_cmp_ge_u32 s2, %d
    s_cbranch_scc1 k1_end
    s_load_dwordx4 s[4:7], s[0:1], 0
    s_load_dwordx4 s[8:11], s[0:1], 16
    s_load_dwordx2 s[12:13], s[0:1], 32
    s_load_dwordx2 s[14:15], s[0:1], 96
    v_and_b32 v1, 63, v0
    v_lshrrev_b32 v5, 6, v0
    v_readfirstlane_b32 s18, v5
    s_mov_b32 s20, 0x05040100
    s_mov_b32 s21, 0x07060302
    s_mov_b32 s22, 0x3f803f80
    s_mov_b32 s23, 0xffff0000
    s_movk_i32 s30, 896
    s_cmp_ge_u32 s2, 256
    s_cbranch_scc1 k1_wo
    s_and_b32 s16, s2, 7
    s_lshr_b32 s19, s2, 5
    s_lshl_b32 s19, s19, 3
    s_add_u32 s16, s16, s19
    s_bfe_u32 s17, s2, 0x20003
    v_and_b32 v2, 31, v1
    v_lshrrev_b32 v3, 5, v1
    s_mul_i32 s19, s18, 224
    v_mul_u32_u24 v5, 0x380, v2
    v_lshl_add_u32 v5, v3, 4, v5
    v_add_u32 v5, s19, v5
    s_mul_i32 s19, s16, 28672
    s_waitcnt lgkmcnt(0)
    s_add_u32 s24, s4, s19
    s_addc_u32 s25, s5, 0
''' % K1_GRID)
    xl = []
    for ks in range(7):
        xl.append(vm.issue('global_load_dwordx4 %s, v5, s[24:25] offset:%d' % (vr(X0 + 4 * ks, 4), 32 * ks)))
    a('''
    s_lshl_b32 s19, s18, 3
    v_add_u32 v4, s19, v2
    v_and_b32 v4, 31, v4
    s_mul_i32 s19, s18, 112
    v_lshl_add_u32 v12, v3, 3, s19
    s_lshl_b32 s19, s17, 8
    v_lshl_add_u32 v13, v4, 3, s19
    v_mad_u32_u24 v13, v12, s30, v13
    v_and_b32 v14, 7, v4
    v_min_u32 v14, 6, v14
    v_lshlrev_b32 v14, 3, v14
    v_mad_u32_u24 v14, v12, 56, v14
    s_cmp_eq_u32 s17, 3
    s_cselect_b32 s19, 16, 32
    v_cmp_le_u32 vcc, s19, v4
    v_cmp_le_u32 s[26:27], 24, v4
    v_mov_b32 v6, s8
    v_mov_b32 v15, s10
    v_mov_b32 v7, s9
    v_mov_b32 v16, s11
    v_cndmask_b32 v6, v6, v15, s[26:27]
    v_cndmask_b32 v7, v7, v16, s[26:27]
    v_mov_b32 v15, s6
    v_mov_b32 v16, s7
    v_cndmask_b32 v6, v15, v6, vcc
    v_cndmask_b32 v7, v16, v7, vcc
    v_cndmask_b32 v13, v13, v14, vcc
    v_mov_b32 v8, s30
    v_cndmask_b32 v8, v8, 56, vcc
    v_mov_b32 v9, 0
    v_mul_u32_u24 v10, 9, v8
    v_mov_b32 v11, 0
    v_add_co_u32 v6, vcc, v6, v13
    v_addc_co_u32 v7, vcc, 0, v7, vcc
''')
    wl = []
    for ks in range(7):
        for j in range(8):
            i = vm.issue('global_load_dwordx2 %s, v[6:7], off' % vr(W0 + 16 * ks + 2 * j, 2))
            if not (ks == 6 and j == 7):
                a('v_lshl_add_u64 v[6:7], %s, 0, v[6:7]' % ('v[10:11]' if j == 7 else 'v[8:9]'))
        wl.append(i)
    a('''
    s_lshl_b32 s19, s16, 15
    v_lshrrev_b32 v6, 3, v2
    v_lshl_add_u32 v6, v6, 13, s19
    v_and_b32 v7, 7, v2
    v_lshl_add_u32 v6, v7, 4, v6
    s_lshl_b32 s19, s17, 5
    s_lshl_b32 s26, s18, 3
    s_add_u32 s19, s19, s26
    v_lshl_add_u32 v7, v3, 2, s19
    s_movk_i32 s26, 147
''')
    for i in range(4):
        a('''
    v_add_u32 v8, %d, v7
    v_mul_u32_u24 v9, s26, v8
    v_lshrrev_b32 v9, 10, v9
    v_mad_i32_i24 v8, v9, -7, v8
    v_lshrrev_b32 v10, 2, v9
    v_lshl_add_u32 v%d, v10, 11, v6
    v_and_b32 v10, 3, v9
    v_lshl_add_u32 v%d, v10, 7, v%d
    v_lshrrev_b32 v10, 1, v8
    v_lshl_add_u32 v%d, v10, 9, v%d
    v_and_b32 v10, 1, v8
    v_lshl_add_u32 v%d, v10, 3, v%d
''' % (i, 12 + i, 12 + i, 12 + i, 12 + i, 12 + i, 12 + i, 12 + i))
    for g in (1, 2, 3):
        a('''
    s_add_u32 s19, s18, %d
    s_and_b32 s19, s19, 3
    s_mul_i32 s19, s19, 3
    s_add_u32 s19, s19, %d
    s_lshl_b32 s19, s19, 12
    v_lshl_add_u32 v%d, v1, 4, s19
''' % (g, g - 1, 15 + g))
    a('''
    s_mul_i32 s19, s18, 12288
    v_lshl_add_u32 v19, v1, 4, s19
    v_lshlrev_b32 v5, 5, v2
    s_lshl_b32 s19, s18, 3
    v_lshl_add_u32 v4, v3, 2, s19
    v_add_u32 v4, v4, v5
    v_mov_b32 v6, 0
    v_mov_b32 v7, 0
''')
    vm.wait(xl[-1])
    for r in range(28):
        a('v_dot2c_f32_bf16 v%d, s22, v%d' % (6 + (r & 1), X0 + r))
    T = F0
    a('''
    v_add_f32 v6, v6, v7
    ds_write_b32 v4, v6 offset:%d
    s_waitcnt lgkmcnt(0)
    s_barrier
    ds_read_b128 %s, v5 offset:%d
    ds_read_b128 %s, v5 offset:%d
    v_mov_b32 v10, 0
    v_mov_b32 v11, 0
    s_waitcnt lgkmcnt(0)
    v_pk_add_f32 %s, %s, %s
    v_pk_add_f32 %s, %s, %s
    v_pk_add_f32 %s, %s, %s
    v_add_f32 v6, v%d, v%d
    v_mul_f32 v6, %s, v6
    v_cvt_pk_bf16_f32 v8, v6, v6
    v_lshlrev_b32 v8, 16, v8
    v_sub_f32 v6, v6, v8
''' % (L_SUM, vr(T, 4), L_SUM, vr(T + 4, 4), L_SUM + 16,
       vr(T, 2), vr(T, 2), vr(T + 2, 2),
       vr(T + 4, 2), vr(T + 4, 2), vr(T + 6, 2),
       vr(T, 2), vr(T, 2), vr(T + 4, 2),
       T, T + 1, f32bits(1.0 / 448)))
    for ks in range(7):
        fs = F0 + 16 * (ks & 1)
        for r in range(4):
            R = X0 + 4 * ks + r
            tp = fs + 2 * r
            a('''
    v_lshlrev_b32 v%d, 16, v%d
    v_and_b32 v%d, s23, v%d
    v_pk_add_f32 %s, %s, v[8:9] op_sel_hi:[1,0] neg_lo:[0,1] neg_hi:[0,1]
    v_pk_fma_f32 v[10:11], %s, %s, v[10:11]
    v_cvt_pk_bf16_f32 v%d, v%d, v%d
''' % (tp, R, tp + 1, R, vr(tp, 2), vr(tp, 2), vr(tp, 2), vr(tp, 2), R, tp, tp + 1))
        vm.wait(wl[ks])
        for e in range(4):
            for p in range(4):
                lo = W0 + 16 * ks + 2 * (2 * p) + (e >> 1)
                hi = W0 + 16 * ks + 2 * (2 * p + 1) + (e >> 1)
                a('v_perm_b32 v%d, v%d, v%d, %s' % (fs + 4 * e + p, hi, lo, 's21' if e & 1 else 's20'))
        for e in range(4):
            acc = vr(ACC0 + 16 * e, 16)
            a('v_mfma_f32_32x32x16_bf16 %s, %s, %s, %s' % (acc, vr(fs + 4 * e, 4), vr(X0 + 4 * ks, 4), '0' if ks == 0 else acc))
    a('''
    v_add_f32 v10, v10, v11
    ds_write_b32 v4, v10 offset:%d
''' % L_SQ)
    for e in range(4):
        for g in (1, 2, 3):
            a('ds_write_b128 v%d, %s offset:%d' % (15 + g, vr(ACC0 + 16 * e + 4 * g, 4), e * 1024))
    a('''
    s_waitcnt lgkmcnt(0)
    s_barrier
    ds_read_b128 %s, v5 offset:%d
    ds_read_b128 %s, v5 offset:%d
''' % (vr(T, 4), L_SQ, vr(T + 4, 4), L_SQ + 16))
    for src in range(3):
        for e in range(4):
            a('ds_read_b128 %s, v19 offset:%d' % (vr(W0 + 16 * src + 4 * e, 4), (src * 4 + e) * 1024))
    a('''
    s_waitcnt lgkmcnt(12)
    v_pk_add_f32 %s, %s, %s
    v_pk_add_f32 %s, %s, %s
    v_pk_add_f32 %s, %s, %s
    v_add_f32 v7, v%d, v%d
    v_mul_f32 v7, %s, v7
    v_fma_f32 v7, -v6, v6, v7
    v_cvt_pk_bf16_f32 v7, v7, v7
    v_lshlrev_b32 v7, 16, v7
    v_add_f32 v7, %s, v7
    v_cvt_pk_bf16_f32 v7, v7, v7
    v_lshlrev_b32 v7, 16, v7
    v_sqrt_f32 v7, v7
    v_cvt_pk_bf16_f32 v7, v7, v7
    v_lshlrev_b32 v7, 16, v7
    v_rcp_f32 v8, v7
''' % (vr(T, 2), vr(T, 2), vr(T + 2, 2),
       vr(T + 4, 2), vr(T + 4, 2), vr(T + 6, 2),
       vr(T, 2), vr(T, 2), vr(T + 4, 2),
       T, T + 1, f32bits(1.0 / 448), f32bits(1e-5)))
    a('''
    s_lshl_b32 s19, s17, 2
    s_add_u32 s19, s19, s18
    s_max_u32 s26, s19, 13
    s_sub_u32 s26, s26, 13
    s_cmp_eq_u32 s26, 0
    s_cselect_b32 s27, %s, 1.0
    v_mul_f32 v8, s27, v8
    s_lshl_b32 s27, s16, 6
    s_lshl_b32 s19, s19, 2
    s_add_u32 s27, s27, s19
    s_add_u32 s27, s27, %d
    s_mov_b32 s28, 0
    s_mov_b32 s29, -1
''' % (f32bits(QSCALE), WS_QMAX))
    for src in range(3):
        a('s_waitcnt lgkmcnt(%d)' % (8 - 4 * src))
        for e in range(4):
            for p in range(2):
                d = vr(ACC0 + 16 * e + 2 * p, 2)
                a('v_pk_add_f32 %s, %s, %s' % (d, d, vr(W0 + 16 * src + 4 * e + 2 * p, 2)))
    for e in range(4):
        for p in range(2):
            d = vr(ACC0 + 16 * e + 2 * p, 2)
            a('v_pk_mul_f32 %s, %s, v[8:9] op_sel_hi:[1,0]' % (d, d))
    N = F0
    for e in range(4):
        for p in range(2):
            d = vr(ACC0 + 16 * e + 2 * p, 2)
            n = vr(N + 2 * p, 2)
            if e == 0:
                a('v_pk_mul_f32 %s, %s, %s' % (n, d, d))
            else:
                a('v_pk_fma_f32 %s, %s, %s, %s' % (n, d, d, n))
    D = F0 + 8
    A = lambda e, i: ACC0 + 16 * e + i
    a('''
    s_cmp_eq_u32 s26, 2
    s_cbranch_scc1 k1_v
''')
    for i in range(4):
        a('v_cvt_pk_bf16_f32 v%d, v%d, v%d' % (D + 2 * i, A(0, i), A(1, i)))
        a('v_cvt_pk_bf16_f32 v%d, v%d, v%d' % (D + 2 * i + 1, A(2, i), A(3, i)))
    a('''
    s_cmp_eq_u32 s26, 1
    s_cbranch_scc1 k1_k
''')
    for i in range(4):
        a('global_store_dwordx2 v%d, %s, s[14:15]' % (12 + i, vr(D + 2 * i, 2)))
    a('''
    v_max3_f32 v6, v%d, v%d, v%d
    v_max_f32 v6, v6, v%d
''' % (N, N + 1, N + 2, N + 3))
    allreduce16(a, 'v_max_f32', 'v6')
    xreduce16(a, 'v_max_f32', 'v6', 'v7')
    xreduce32(a, 'v_max_f32', 'v6', 'v7')
    a('''
    v_mov_b32 v7, s27
    s_mov_b64 exec, 1
    global_store_dword v7, v6, s[14:15]
    s_endpgm
''')
    a('''
k1_k:
    v_mov_b32 v6, s22
    v_mov_b32 v7, 0x3f80
    v_cndmask_b32 v%d, v%d, v6, s[28:29]
    v_cndmask_b32 v%d, v%d, v7, s[28:29]
    v_cndmask_b32 v%d, v%d, 0, s[28:29]
    s_lshl_b32 s19, s16, 12
    s_add_u32 s19, s19, %d
    v_lshl_add_u32 v12, v2, 4, s19
    v_lshl_add_u32 v12, v3, 10, v12
''' % (D + 6, D + 6, D + 7, D + 7, N + 3, N + 3, WS_KV))
    for i in range(4):
        a('global_store_dwordx2 v12, %s, s[14:15] offset:%d' % (vr(D + 2 * i, 2), (i >> 1) * 512 + (i & 1) * 8))
    a('''
    v_add_f32 v6, v%d, v%d
    v_add_f32 v7, v%d, v%d
    v_add_f32 v6, v6, v7
''' % (N, N + 1, N + 2, N + 3))
    xreduce32(a, 'v_add_f32', 'v6', 'v7')
    allreduce16(a, 'v_max_f32', 'v6')
    xreduce16(a, 'v_max_f32', 'v6', 'v7')
    a('''
    s_lshl_b32 s19, s16, 2
    s_add_u32 s19, s19, %d
    v_mov_b32 v7, s19
    v_mov_b32 v8, s27
    v_mov_b32 v9, 0
    s_mov_b64 exec, 1
    global_store_dword v7, v6, s[14:15]
    global_store_dword v8, v9, s[14:15]
    s_endpgm
''' % WS_KMAX)
    a('''
k1_v:
    v_cndmask_b32 v%d, v%d, 1.0, s[28:29]
    v_cndmask_b32 v%d, v%d, 0, s[28:29]
    v_cndmask_b32 v%d, v%d, 0, s[28:29]
    v_cndmask_b32 v%d, v%d, 0, s[28:29]
    s_lshl_b32 s19, s16, 12
    s_add_u32 s19, s19, %d
    v_lshrrev_b32 v6, 4, v2
    v_lshl_add_u32 v12, v6, 10, s19
    v_bfe_u32 v6, v2, 2, 1
    v_lshl_add_u32 v12, v6, 9, v12
    v_lshl_add_u32 v12, v3, 8, v12
    v_bfe_u32 v6, v2, 3, 1
    v_lshl_add_u32 v12, v6, 3, v12
    v_and_b32 v6, 3, v2
    v_lshl_add_u32 v12, v6, 1, v12
''' % (A(0, 3), A(0, 3), A(1, 3), A(1, 3), A(2, 3), A(2, 3), A(3, 3), A(3, 3), WS_KV + 2048))
    for i in range(4):
        a('v_cvt_pk_bf16_f32 v%d, v%d, v%d' % (D + 2 * i, A(0, i), A(1, i)))
        a('v_cvt_pk_bf16_f32 v%d, v%d, v%d' % (D + 2 * i + 1, A(2, i), A(3, i)))
    for i in range(4):
        for e in range(4):
            op = 'global_store_short_d16_hi' if e & 1 else 'global_store_short'
            a('%s v12, v%d, s[14:15] offset:%d' % (op, D + 2 * i + (e >> 1), 64 * i + 16 * e))
    a('''
    v_max3_f32 v6, v%d, v%d, v%d
    v_max_f32 v6, v6, v%d
''' % (N, N + 1, N + 2, N + 3))
    allreduce16(a, 'v_max_f32', 'v6')
    xreduce16(a, 'v_max_f32', 'v6', 'v7')
    xreduce32(a, 'v_max_f32', 'v6', 'v7')
    a('''
    v_mov_b32 v8, %s
    v_mov_b32 v9, 0x7f800000
    v_cmp_nle_f32 vcc, v6, v8
    v_cndmask_b32 v6, 0, v9, vcc
    v_mov_b32 v7, s27
    s_mov_b64 exec, 1
    global_store_dword v7, v6, s[14:15]
    s_endpgm
''' % f32bits(2.0 ** 80))
    a('''
k1_wo:
    s_sub_u32 s16, s2, 256
    s_lshl_b32 s16, s16, 2
    s_add_u32 s16, s16, s18
    s_cmp_ge_u32 s16, 98
    s_cbranch_scc1 k1_zero
    s_mul_i32 s17, s16, 147
    s_lshr_b32 s17, s17, 10
    s_mul_i32 s19, s17, 7
    s_sub_u32 s16, s16, s19
    v_and_b32 v2, 15, v1
    v_lshrrev_b32 v3, 4, v1
    v_mul_u32_u24 v4, 0x1c00, v3
    v_lshl_add_u32 v4, v2, 3, v4
    v_add_u32 v5, 0xe00, v4
    s_mul_i32 s19, s17, 28672
    s_lshl_b32 s26, s16, 7
    s_add_u32 s19, s19, s26
    s_waitcnt lgkmcnt(0)
    s_add_u32 s24, s12, s19
    s_addc_u32 s25, s13, 0
''')
    for j in range(8):
        a('global_load_dwordx2 %s, %s, s[24:25] offset:%d' % (vr(W0 + 2 * j, 2), 'v4' if j < 4 else 'v5', (j & 3) * 896))
    a('''
    s_mul_i32 s19, s17, 7168
    s_add_u32 s19, s19, %d
    s_lshl_b32 s26, s16, 2
    v_lshrrev_b32 v6, 2, v2
    v_add_u32 v6, s26, v6
    v_mul_u32_u24 v7, 37, v6
    v_lshrrev_b32 v7, 8, v7
    v_mul_u32_u24 v7, 0x16c00, v7
    v_lshl_add_u32 v6, v6, 10, s19
    v_add_u32 v6, v6, v7
    v_and_b32 v7, 3, v2
    v_lshl_add_u32 v6, v7, 6, v6
    v_lshl_add_u32 v6, v3, 8, v6
    s_waitcnt vmcnt(0)
''' % WS_WOF)
    for e in range(4):
        for p in range(4):
            lo = W0 + 2 * (2 * p) + (e >> 1)
            hi = W0 + 2 * (2 * p + 1) + (e >> 1)
            a('v_perm_b32 v%d, v%d, v%d, %s' % (F0 + 4 * e + p, hi, lo, 's21' if e & 1 else 's20'))
    for e in range(4):
        a('global_store_dwordx4 v6, %s, s[14:15] offset:%d' % (vr(F0 + 4 * e, 4), 16 * e))
    a('''
    s_endpgm
k1_zero:
    s_cmp_eq_u32 s16, 98
    s_cbranch_scc0 k1_end
    v_mov_b32 v4, 0
    v_mov_b32 v5, 0
    v_mov_b32 v6, 0
    v_mov_b32 v7, 0
    v_lshlrev_b32 v2, 4, v1
    v_add_u32 v2, %d, v2
    s_waitcnt lgkmcnt(0)
''' % WS_YACC)
    for i in range(4):
        a('global_store_dwordx4 v2, v[4:7], s[14:15] offset:%d' % (1024 * i))
    a('''
k1_end:
    s_endpgm
''')
```

```python
from common import *

K2_GRID = 256
K2_LDS = 65536
O0, Q0, S0, P0, KB0, VB0, FR0 = 16, 80, 112, 144, 152, 176, 200
L_O, L_A, L_KEY = 49152, 57344, 65280
OSTR = 912
M32 = 'v_mfma_f32_32x32x16_bf16'
M16 = 'v_mfma_f32_16x16x32_bf16'

WO_START = 8
WO_END = 60


def frag_reg(f):
    if f < 64:
        return ar(4 * f, 4)
    if f < 78:
        return vr(FR0 + 4 * (f - 64), 4)
    g = f - 78
    if g < 6:
        return vr(KB0 + 4 * g, 4)
    if g < 12:
        return vr(VB0 + 4 * (g - 6), 4)
    return vr(S0 + 4 * (g - 12), 4)


def k2(a):
    vm = VmTracker(a)
    Ob = lambda b: vr(O0 + 16 * b, 16)
    Qf = lambda b, s: vr(Q0 + 8 * b + 4 * s, 4)
    Sb = lambda n: S0 + 16 * (n & 1)
    Kf = lambda t, s: vr(KB0 + 8 * (t % 3) + 4 * s, 4)
    Vf = lambda t, u: vr(VB0 + 8 * (t % 3) + 4 * u, 4)
    soff = lambda t: 's%d' % (11 + t % 3)

    def tile_off(t):
        a('''
    s_add_u32 %s, s9, %d
    s_and_b32 %s, %s, 15
    s_lshl_b32 %s, %s, 12
    s_add_u32 %s, %s, s10
''' % (soff(t), t, soff(t), soff(t), soff(t), soff(t), soff(t), soff(t)))

    ld = {}

    def load_k(t):
        for s in range(2):
            ld[('k', t)] = vm.issue('buffer_load_dwordx4 %s, v1, s[4:7], %s offen offset:%d' % (Kf(t, s), soff(t), 1024 * s))

    def load_v(t):
        for u in range(2):
            ld[('v', t)] = vm.issue('buffer_load_dwordx4 %s, v1, s[4:7], %s offen offset:%d' % (Vf(t, u), soff(t), 2048 + 1024 * u))

    wo_state = {'blk': -1}

    def load_wo(f):
        if (f >> 2) != wo_state['blk']:
            wo_state['blk'] = f >> 2
            a('s_mov_b32 s96, 0x%x' % (WS_WOF + (f >> 2) * 4096))
        ld[('w', f)] = vm.issue('buffer_load_dwordx4 %s, v2, s[4:7], s96 offen offset:%d' % (frag_reg(f), (f & 3) * 1024))

    a('''
k2_kernel:
    s_cmp_ge_u32 s2, %d
    s_cbranch_scc1 k2_end
    s_load_dwordx2 s[14:15], s[0:1], 96
    v_and_b32 v3, 63, v0
    v_lshrrev_b32 v4, 6, v0
    v_readfirstlane_b32 s3, v4
    v_lshlrev_b32 v1, 4, v3
    s_mov_b32 s6, 0x10000000
    s_mov_b32 s7, 0x00020000
    s_mov_b32 s8, 0
    s_bfe_u32 s9, s2, 0x40003
    s_lshl_b32 s10, s3, 16
    s_add_u32 s10, s10, %d
    s_mul_i32 s96, s3, 100352
    v_add_u32 v2, s96, v1
    s_lshl_b32 s97, s2, 13
    s_waitcnt lgkmcnt(0)
    s_mov_b32 s4, s14
    s_mov_b32 s5, s15
''' % (K2_GRID, WS_KV))
    for b in range(4):
        a('''
    s_add_u32 s96, s3, %d
    s_and_b32 s96, s96, 3
    s_lshl_b32 s96, s96, 11
    s_add_u32 s96, s96, s97
''' % b)
        for s in range(2):
            ld['q'] = vm.issue('buffer_load_dwordx4 %s, v1, s[4:7], s96 offen offset:%d' % (Qf(b, s), 1024 * s))
    a('''
    s_add_u32 s98, s14, %d
    s_addc_u32 s99, s15, 0
    s_lshr_b32 s96, s2, 2
    s_lshl_b32 s96, s96, 6
    s_add_u32 s100, s98, s96
    s_addc_u32 s101, s99, 0
    s_load_dwordx16 s[16:31], s[100:101], %d
    s_load_dwordx16 s[32:47], s[98:99], 0
    s_load_dwordx16 s[48:63], s[98:99], 64
    s_load_dwordx16 s[64:79], s[98:99], 128
    s_load_dwordx16 s[80:95], s[98:99], 192
''' % (WS_KMAX, WS_QMAX - WS_KMAX))
    tile_off(0)
    load_k(0)
    load_v(0)
    vm.wait(ld['q'])
    a('s_mov_b32 exec_lo, 0')
    for b in range(4):
        a('v_mov_b32 v%d, 0' % (Q0 + 8 * b + 6))
        a('v_mov_b32 v%d, 0' % (Q0 + 8 * b + 7))
    a('s_mov_b64 exec, -1')
    a('s_branch k2_go')
    a('k2_restart:')
    tile_off(0)
    for s in range(2):
        a('buffer_load_dwordx4 %s, v1, s[4:7], %s offen offset:%d' % (Kf(0, s), soff(0), 1024 * s))
    for u in range(2):
        a('buffer_load_dwordx4 %s, v1, s[4:7], %s offen offset:%d' % (Vf(0, u), soff(0), 2048 + 1024 * u))
    a('k2_go:')
    for t in (1, 2):
        tile_off(t)
        load_k(t)
        load_v(t)
    a('''
    s_lshr_b32 s96, s2, 3
    s_lshl_b32 s96, s96, 2
    s_add_u32 s96, s96, s3
    s_mul_i32 s96, s96, 3136
    s_add_u32 s96, s96, %d
''' % WS_WOF)
    for i in range(4):
        vm.issue('buffer_load_dwordx4 %s, v1, s[4:7], s96 offen offset:%d' % (vr(FR0 + 4 * i, 4), 1024 * i))
    vm.wait(ld[('k', 0)])
    a('%s %s, %s, %s, 0' % (M32, vr(Sb(0), 16), Kf(0, 0), Qf(0, 0)))
    a('%s %s, %s, %s, %s' % (M32, vr(Sb(0), 16), Kf(0, 1), Qf(0, 1), vr(Sb(0), 16)))

    side = {}

    def at(n, g, fn):
        side.setdefault((n, g), []).append(fn)

    for t in range(3, 16):
        at(4 * (t - 3) + 3, 0, lambda t=t: (tile_off(t), load_k(t)))
        at(4 * (t - 3) + 4, 2, lambda t=t: load_v(t))
    nwo = 78
    pos = [(n, g) for n in range(WO_START, WO_END) for g in (1, 3)]
    for f in range(nwo):
        n, g = pos[(f * len(pos)) // nwo]
        at(n, g, lambda f=f: load_wo(f))
    for t, n in ((13, 55), (14, 59)):
        pass
    chain = ['s_waitcnt lgkmcnt(0)']
    chain += ['s_max_u32 s16, s16, s%d' % i for i in range(17, 32)]
    chain += ['s_max_u32 s32, s32, s%d' % i for i in range(33, 96)]
    per = 7
    cpos = [(n, g) for n in range(1, 5) for g in range(4)]
    for i in range(0, len(chain), per):
        n, g = cpos[i // per]
        at(n, g, lambda c=chain[i:i + per]: a('\n'.join(c)))

    def check():
        a('''
    v_mov_b32 v3, s16
    v_mul_f32 v3, s32, v3
    v_mov_b32 v4, %s
    v_cmp_nle_f32 vcc, v3, v4
    s_cmp_eq_u32 s8, 0
    s_cselect_b64 vcc, vcc, 0
    s_cbranch_vccnz k2_fallback
    s_load_dwordx2 s[16:17], s[0:1], 0
    s_load_dwordx2 s[18:19], s[0:1], 48
    s_load_dwordx2 s[20:21], s[0:1], 80
''' % f32bits(64.0 * 64.0 / (7.0 * 1.05)))
    at(5, 0, check)

    def group(n, g):
        s = Sb(n)
        for fn in side.get((n, g), []):
            fn()
        for j in range(4):
            a('v_exp_f32 v%d, v%d' % (s + 4 * g + j, s + 4 * g + j))
        for j in range(2):
            a('v_cvt_pk_bf16_f32 v%d, v%d, v%d' % (P0 + 2 * g + j, s + 4 * g + 2 * j, s + 4 * g + 2 * j + 1))

    for n in range(64):
        t, b = n >> 2, n & 3
        t1, b1 = (n + 1) >> 2, (n + 1) & 3
        tm, bm = (n - 1) >> 2, (n - 1) & 3
        if n + 1 < 64:
            vm.wait(ld[('k', t1)])
            a('%s %s, %s, %s, 0' % (M32, vr(Sb(n + 1), 16), Kf(t1, 0), Qf(b1, 0)))
        group(n, 0)
        if n > 0:
            a('%s %s, %s, %s, %s' % (M32, Ob(bm), Vf(tm, 1), vr(P0 + 4, 4), Ob(bm)))
        group(n, 1)
        if n + 1 < 64:
            a('%s %s, %s, %s, %s' % (M32, vr(Sb(n + 1), 16), Kf(t1, 1), Qf(b1, 1), vr(Sb(n + 1), 16)))
        group(n, 2)
        vm.wait(ld[('v', t)])
        a('%s %s, %s, %s, %s' % (M32, Ob(b), Vf(t, 0), vr(P0, 4), '0' if t == 0 else Ob(b)))
        group(n, 3)
    a('%s %s, %s, %s, %s' % (M32, Ob(3), Vf(15, 1), vr(P0 + 4, 4), Ob(3)))
    late = list(range(78, 84)) + list(range(90, 98)) + [86, 87, 88, 89]
    for f in late:
        load_wo(f)
    a('''
    v_and_b32 v3, 31, v0
    v_lshrrev_b32 v4, 5, v0
    v_lshlrev_b32 v5, 5, v3
    s_lshl_b32 s22, s2, 3
    v_add_u32 v6, s22, v4
    v_mul_u32_u24 v7, 0x380, v6
    v_add_u32 v7, v7, v5
    s_mov_b32 s24, 0x0fffffff
    s_mov_b32 s25, 0x0fffffff
    s_mov_b32 s23, 0xffff0000
''')
    for g in (1, 2, 3):
        a('''
    s_add_u32 s96, s3, %d
    s_and_b32 s96, s96, 3
    s_mul_i32 s96, s96, 3
    s_add_u32 s96, s96, %d
    s_lshl_b32 s96, s96, 12
    v_add_u32 v%d, s96, v1
''' % (g, g - 1, 7 + g))
    wo_state['blk'] = -1
    a('''
    s_mul_i32 s96, s3, 12288
    v_add_u32 v11, s96, v1
''')
    for g in (1, 2, 3):
        for q in range(4):
            a('ds_write_b128 v%d, %s offset:%d' % (7 + g, vr(O0 + 16 * g + 4 * q, 4), q * 1024))
    load_wo(84)
    load_wo(85)
    for i in range(8):
        a('v_mov_b32 v%d, 0' % (P0 + i))
    a('''
    s_waitcnt lgkmcnt(0)
    s_mov_b64 exec, s[24:25]
''')
    ld['x0'] = vm.issue('global_load_dwordx4 %s, v7, s[16:17]' % vr(P0, 4))
    ld['x'] = vm.issue('global_load_dwordx4 %s, v7, s[16:17] offset:16' % vr(P0 + 4, 4))
    a('''
    s_mov_b64 exec, -1
    s_barrier
''')
    for src in range(3):
        for q in range(4):
            a('ds_read_b128 %s, v11 offset:%d' % (vr(O0 + 16 * (src + 1) + 4 * q, 4), (src * 4 + q) * 1024))
    a('''
    v_and_b32 v8, 7, v0
    v_mul_u32_u24 v8, %d, v8
    v_bfe_u32 v9, v0, 3, 2
    v_mul_u32_u24 v9, 56, v9
    v_add_u32 v8, v8, v9
    v_bfe_u32 v9, v0, 5, 1
    v_lshl_add_u32 v8, v9, 3, v8
    s_mul_i32 s96, s3, 224
    v_add_u32 v8, s96, v8
    v_and_b32 v9, 7, v0
    v_mul_u32_u24 v9, %d, v9
    v_bfe_u32 v10, v0, 4, 2
    v_lshl_add_u32 v11, v10, 3, v9
    v_add_u32 v11, s96, v11
    v_lshl_add_u32 v9, v10, 4, v9
''' % (OSTR, OSTR))
    for src in range(3):
        a('s_waitcnt lgkmcnt(%d)' % (8 - 4 * src))
        for p in range(8):
            d = vr(O0 + 2 * p, 2)
            a('v_pk_add_f32 %s, %s, %s' % (d, d, vr(O0 + 16 * (src + 1) + 2 * p, 2)))
    a('''
    v_mov_b32 v12, v%d
    v_mov_b32 v13, v%d
    v_permlane32_swap_b32 v12, v13
    v_rcp_f32 v12, v13
''' % (O0 + 12, O0 + 12))
    for p in range(8):
        d = vr(O0 + 2 * p, 2)
        a('v_pk_mul_f32 %s, %s, v[12:13] op_sel_hi:[1,0]' % (d, d))
    for p in range(8):
        a('v_cvt_pk_bf16_f32 v%d, v%d, v%d' % (O0 + 16 + p, O0 + 2 * p, O0 + 2 * p + 1))
    for g in range(3):
        a('ds_write_b64 v8, %s offset:%d' % (vr(O0 + 16 + 2 * g, 2), L_O + 16 * g))
    a('''
    s_mov_b32 exec_hi, 0
    ds_write_b64 v8, %s offset:%d
    s_mov_b64 exec, -1
    s_waitcnt lgkmcnt(0)
    s_barrier
''' % (vr(O0 + 22, 2), L_O + 48))
    B0 = O0
    for ks in range(14):
        a('ds_read_b128 %s, v9 offset:%d' % (vr(B0 + 4 * ks, 4), L_O + 64 * ks))
    WR = 72
    for i in range(8):
        a('v_mov_b32 v%d, 0' % (WR + i))
    a('s_mov_b64 exec, s[24:25]')
    vm.issue('global_load_dwordx4 %s, v5, s[18:19]' % vr(WR, 4))
    ld['wr'] = vm.issue('global_load_dwordx4 %s, v5, s[18:19] offset:16' % vr(WR + 4, 4))
    a('s_mov_b64 exec, -1')
    D0 = Q0
    for ks in range(14):
        a('s_waitcnt lgkmcnt(%d)' % (13 - ks))
        for tt in range(7):
            f = ks * 7 + tt
            vm.wait(ld[('w', f)])
            d = vr(D0 + 4 * tt, 4)
            a('%s %s, %s, %s, %s' % (M16, d, frag_reg(f), vr(B0 + 4 * ks, 4), '0' if ks == 0 else d))
    a('s_mov_b32 exec_lo, 0x00ff00ff')
    a('s_mov_b32 exec_hi, 0x00ff00ff')
    for tt in range(7):
        a('v_cvt_pk_bf16_f32 v%d, v%d, v%d' % (B0 + 2 * tt, D0 + 4 * tt, D0 + 4 * tt + 1))
        a('v_cvt_pk_bf16_f32 v%d, v%d, v%d' % (B0 + 2 * tt + 1, D0 + 4 * tt + 2, D0 + 4 * tt + 3))
        a('ds_write_b64 v11, %s offset:%d' % (vr(B0 + 2 * tt, 2), L_A + 32 * tt))
    AP = 32
    a('s_mov_b64 exec, -1')
    for i in range(8):
        a('v_mov_b32 v%d, 0' % (AP + i))
    a('''
    v_mul_u32_u24 v8, %d, v4
    v_add_u32 v8, v8, v5
    s_waitcnt lgkmcnt(0)
    s_barrier
    s_mov_b64 exec, s[24:25]
    ds_read_b128 %s, v8 offset:%d
    ds_read_b128 %s, v8 offset:%d
    s_mov_b64 exec, -1
''' % (OSTR, vr(AP, 4), L_A, vr(AP + 4, 4), L_A + 16))
    HF = 80
    HP = 40
    DF = 96
    NP = 48
    OP = 56
    vm.wait(ld['wr'])
    for p in range(8):
        a('''
    v_lshlrev_b32 v%d, 16, v%d
    v_and_b32 v%d, s23, v%d
''' % (HF + 2 * p, P0 + p, HF + 2 * p + 1, P0 + p))
    a('s_waitcnt lgkmcnt(0)')
    for p in range(8):
        h2, d2 = vr(HF + 2 * p, 2), vr(DF + 2 * p, 2)
        a('''
    v_lshlrev_b32 v%d, 16, v%d
    v_and_b32 v%d, s23, v%d
    v_pk_add_f32 %s, %s, %s
    v_cvt_pk_bf16_f32 v%d, v%d, v%d
    v_lshlrev_b32 v%d, 16, v%d
    v_and_b32 v%d, s23, v%d
''' % (DF + 2 * p, AP + p, DF + 2 * p + 1, AP + p, h2, h2, d2, HP + p, HF + 2 * p, HF + 2 * p + 1,
       HF + 2 * p, HP + p, HF + 2 * p + 1, HP + p))
    a('v_pk_add_f32 v[12:13], %s, %s' % (vr(HF, 2), vr(HF + 2, 2)))
    a('v_pk_add_f32 v[14:15], %s, %s' % (vr(HF + 4, 2), vr(HF + 6, 2)))
    for p in range(4, 8, 2):
        a('v_pk_add_f32 v[12:13], v[12:13], %s' % vr(HF + 2 * p, 2))
        a('v_pk_add_f32 v[14:15], v[14:15], %s' % vr(HF + 2 * p + 2, 2))
    a('''
    v_pk_add_f32 v[12:13], v[12:13], v[14:15]
    v_add_f32 v12, v12, v13
''')
    allreduce16(a, 'v_add_f32', 'v12')
    xreduce16(a, 'v_add_f32', 'v12', 'v13')
    a('''
    v_mul_f32 v12, %s, v12
    v_cvt_pk_bf16_f32 v14, v12, v12
    v_lshlrev_b32 v14, 16, v14
    v_sub_f32 v12, v12, v14
    v_mov_b32 v10, 0
    v_mov_b32 v11, 0
    s_mov_b64 exec, s[24:25]
''' % f32bits(1.0 / 448))
    for p in range(8):
        h2, d2 = vr(HF + 2 * p, 2), vr(DF + 2 * p, 2)
        a('''
    v_pk_add_f32 %s, %s, v[14:15] op_sel_hi:[1,0] neg_lo:[0,1] neg_hi:[0,1]
    v_pk_fma_f32 v[10:11], %s, %s, v[10:11]
''' % (d2, h2, d2, d2))
    a('''
    s_mov_b64 exec, -1
    v_add_f32 v10, v10, v11
''')
    allreduce16(a, 'v_add_f32', 'v10')
    xreduce16(a, 'v_add_f32', 'v10', 'v11')
    for p in range(8):
        a('''
    v_cvt_pk_bf16_f32 v%d, v%d, v%d
    v_lshlrev_b32 v%d, 16, v%d
    v_and_b32 v%d, s23, v%d
''' % (NP + p, DF + 2 * p, DF + 2 * p + 1, DF + 2 * p, NP + p, DF + 2 * p + 1, NP + p))
    a('''
    v_mul_f32 v10, %s, v10
    v_fma_f32 v10, -v12, v12, v10
    v_cvt_pk_bf16_f32 v10, v10, v10
    v_lshlrev_b32 v10, 16, v10
    v_add_f32 v10, %s, v10
    v_cvt_pk_bf16_f32 v10, v10, v10
    v_lshlrev_b32 v10, 16, v10
    v_sqrt_f32 v10, v10
    v_cvt_pk_bf16_f32 v10, v10, v10
    v_lshlrev_b32 v10, 16, v10
    v_rcp_f32 v10, v10
    v_mov_b32 v12, 0
    v_mov_b32 v13, 0
''' % (f32bits(1.0 / 448), f32bits(1e-5)))
    for p in range(8):
        d2 = vr(DF + 2 * p, 2)
        a('''
    v_pk_mul_f32 %s, %s, v[10:11] op_sel_hi:[1,0]
    v_cvt_pk_bf16_f32 v%d, v%d, v%d
''' % (d2, d2, NP + p, DF + 2 * p, DF + 2 * p + 1))
    for p in range(8):
        a('v_dot2c_f32_bf16 v%d, v%d, v%d' % (12 + (p & 1), NP + p, WR + p))
    for p in range(8):
        h2, d2 = vr(HF + 2 * p, 2), vr(DF + 2 * p, 2)
        a('''
    v_lshlrev_b32 v%d, 16, v%d
    v_and_b32 v%d, s23, v%d
    v_pk_add_f32 %s, %s, %s
    v_cvt_pk_bf16_f32 v%d, v%d, v%d
''' % (DF + 2 * p, NP + p, DF + 2 * p + 1, NP + p, d2, d2, h2, OP + p, DF + 2 * p, DF + 2 * p + 1))
    a('''
    s_mov_b64 exec, s[24:25]
    global_store_dwordx4 v7, %s, s[20:21]
    global_store_dwordx4 v7, %s, s[20:21] offset:16
    s_mov_b64 exec, -1
    v_add_f32 v12, v12, v13
''' % (vr(OP, 4), vr(OP + 4, 4)))
    allreduce16(a, 'v_add_f32', 'v12')
    xreduce16(a, 'v_add_f32', 'v12', 'v13')
    a('''
    v_and_b32 v12, 0xfffff800, v12
    v_or_b32 v12, v12, v6
    v_lshlrev_b32 v13, 2, v4
    v_mov_b32 v14, 0
    ds_write_b32 v13, v12 offset:%d
    v_lshlrev_b32 v7, 1, v7
    v_sub_u32 v7, v7, v5
    v_add_u32 v7, %d, v7
    s_waitcnt lgkmcnt(0)
    s_barrier
    ds_read_b128 v[16:19], v14 offset:%d
    ds_read_b128 v[20:23], v14 offset:%d
    s_waitcnt lgkmcnt(0)
    v_max_f32 v24, v16, v17
    v_min_f32 v25, v16, v17
''' % (L_KEY, WS_CROW, L_KEY, L_KEY + 16))
    for i in range(18, 24):
        a('v_med3_f32 v25, v24, v25, v%d' % i)
        a('v_max_f32 v24, v24, v%d' % i)
    a('''
    v_cmp_ge_f32 vcc, v12, v25
    s_and_b64 exec, vcc, s[24:25]
    s_cbranch_execz k2_nocand
    global_store_dwordx4 v7, %s, s[14:15]
    global_store_dwordx4 v7, %s, s[14:15] offset:16
    global_store_dwordx4 v7, %s, s[14:15] offset:896
    global_store_dwordx4 v7, %s, s[14:15] offset:912
k2_nocand:
    s_cmp_eq_u32 s3, 0
    s_cbranch_scc0 k2_end
    s_mov_b64 exec, 1
    s_lshl_b32 s96, s2, 3
    s_add_u32 s96, s96, %d
    v_mov_b32 v13, s96
    global_store_dwordx2 v13, v[24:25], s[14:15]
k2_end:
    s_endpgm
''' % (vr(HP, 4), vr(HP + 4, 4), vr(NP, 4), vr(NP + 4, 4), WS_KEY))

    MX = P0
    a('''
k2_fallback:
    s_waitcnt vmcnt(0)
    s_mov_b32 s8, 1
    s_mov_b32 s96, 0
''')
    for b in range(4):
        a('v_mov_b32 v%d, 0xff800000' % (MX + b))
    a('''
k2_fb_loop:
    s_add_u32 s11, s96, s10
    buffer_load_dwordx4 %s, v1, s[4:7], s11 offen
    buffer_load_dwordx4 %s, v1, s[4:7], s11 offen offset:1024
    s_waitcnt vmcnt(0)
''' % (Kf(0, 0), Kf(0, 1)))
    for b in range(4):
        s = Sb(b)
        a('%s %s, %s, %s, 0' % (M32, vr(s, 16), Kf(0, 0), Qf(b, 0)))
        a('%s %s, %s, %s, %s' % (M32, vr(s, 16), Kf(0, 1), Qf(b, 1), vr(s, 16)))
        for j in range(8):
            a('v_max3_f32 v%d, v%d, v%d, v%d' % (MX + b, MX + b, s + 2 * j, s + 2 * j + 1))
    a('''
    s_add_u32 s96, s96, 4096
    s_cmp_lt_u32 s96, 65536
    s_cbranch_scc1 k2_fb_loop
''')
    a('''
    v_and_b32 v3, 31, v0
    v_lshlrev_b32 v3, 4, v3
    s_lshl_b32 s96, s3, 2
    v_add_u32 v4, s96, v3
''')
    for b in range(4):
        xreduce32(a, 'v_max_f32', 'v%d' % (MX + b), 'v5')
        a('''
    s_add_u32 s96, s3, %d
    s_and_b32 s96, s96, 3
    s_lshl_b32 s96, s96, 9
    v_add_u32 v%d, s96, v4
    v_add_u32 v%d, s96, v3
    ds_write_b32 v%d, v%d
''' % (b, 6, 8 + b, 6, MX + b))
    a('''
    s_waitcnt lgkmcnt(0)
    s_barrier
''')
    for b in range(4):
        a('ds_read_b128 %s, v%d' % (vr(S0 + 4 * b, 4), 8 + b))
    a('''
    s_waitcnt lgkmcnt(0)
    s_barrier
    s_mov_b32 exec_lo, 0
''')
    for b in range(4):
        s = S0 + 4 * b
        a('''
    v_max3_f32 v3, v%d, v%d, v%d
    v_max_f32 v3, v3, v%d
    v_mul_f32 v3, -1.0, v3
    v_cvt_pk_bf16_f32 v4, v3, v3
    v_lshlrev_b32 v5, 16, v4
    v_sub_f32 v3, v3, v5
    v_cvt_pk_bf16_f32 v5, v3, v3
    v_and_b32 v5, 0xffff0000, v5
    v_sub_f32 v3, v3, v5
    v_and_b32 v4, 0xffff, v4
    v_or_b32 v%d, v4, v5
    v_cvt_pk_bf16_f32 v%d, v3, 0
''' % (s, s + 1, s + 2, s + 3, Q0 + 8 * b + 6, Q0 + 8 * b + 7))
    a('''
    s_mov_b64 exec, -1
    s_branch k2_restart
''')
```

```python
from common import *

K3_GRID = 56
K3_BLOCK = 448
K3_LDS = 16384
M16 = 'v_mfma_f32_16x16x32_bf16'
L_P, L_AB, L_Y, L_F = 0, 4096, 4608, 8704
LOG2E = math.log2(math.e)


def k3(a):
    vm = VmTracker(a)
    KEY = 16
    GW = 24
    DW = 56
    GF = 72
    DFr = 104
    HB = 120
    GA = 128
    a('''
k3_kernel:
    s_cmp_ge_u32 s2, %d
    s_cbranch_scc1 k3_end
    s_load_dwordx4 s[8:11], s[0:1], 56
    s_load_dwordx4 s[12:15], s[0:1], 72
    s_load_dwordx2 s[16:17], s[0:1], 96
    v_and_b32 v1, 63, v0
    v_lshrrev_b32 v2, 6, v0
    v_readfirstlane_b32 s3, v2
    v_and_b32 v2, 15, v1
    v_lshrrev_b32 v3, 4, v1
    v_lshlrev_b32 v4, 5, v1
    v_add_u32 v4, %d, v4
    s_mov_b32 s20, 0x05040100
    s_mov_b32 s21, 0x07060302
    s_mul_i32 s18, s3, 229376
    s_lshl_b32 s19, s2, 6
    s_add_u32 s18, s18, s19
    v_mul_u32_u24 v5, 0x7000, v3
    v_lshl_add_u32 v5, v2, 2, v5
    v_add_u32 v5, s18, v5
    s_mov_b32 s26, 1605632
    s_mov_b32 s27, 0x00020000
    s_mov_b32 s30, 1605632
    s_mov_b32 s31, 0x00020000
''' % (K3_GRID, WS_KEY))
    for i in range(1, 16):
        ks2, j = i >> 3, i & 7
        a('s_mov_b32 s%d, %d' % (32 + i, (32 * ks2 + j) * 3584))
    a('''
    v_mul_u32_u24 v6, 0x1c00, v3
    v_lshl_add_u32 v6, v2, 3, v6
    s_lshl_b32 s18, s3, 7
    v_add_u32 v6, s18, v6
    v_add_u32 v7, 0xe00, v6
    s_mul_i32 s18, s2, 28672
    s_waitcnt lgkmcnt(0)
    s_mov_b32 s24, s8
    s_mov_b32 s25, s9
    s_mov_b32 s28, s10
    s_mov_b32 s29, s11
    s_add_u32 s22, s12, s18
    s_addc_u32 s23, s13, 0
''')
    vm.issue('global_load_dwordx4 %s, v4, s[16:17]' % vr(KEY, 4))
    lkey = vm.issue('global_load_dwordx4 %s, v4, s[16:17] offset:16' % vr(KEY + 4, 4))
    lg = {}
    for mat in range(2):
        for i in range(16):
            so = '0' if i == 0 else 's%d' % (32 + i)
            lg[(mat, i >> 3)] = vm.issue('buffer_load_dword v%d, v5, %s, %s offen' % (GW + 16 * mat + i, 's[24:27]' if mat == 0 else 's[28:31]', so))
    for j in range(8):
        ldn = vm.issue('global_load_dwordx2 %s, %s, s[22:23] offset:%d' % (vr(DW + 2 * j, 2), 'v6' if j < 4 else 'v7', (j & 3) * 896))
    vm.wait(lkey)
    a('''
    v_max_f32 v8, v%d, v%d
    v_min_f32 v9, v%d, v%d
''' % (KEY, KEY + 1, KEY, KEY + 1))
    for i in range(2, 8):
        a('v_med3_f32 v9, v8, v9, v%d' % (KEY + i))
        a('v_max_f32 v8, v8, v%d' % (KEY + i))
    for r in (1, 2, 4, 8):
        a('''
    v_mov_b32_dpp v10, v8 row_ror:%d row_mask:0xf bank_mask:0xf
    v_max_f32_dpp v9, v9, v9 row_ror:%d row_mask:0xf bank_mask:0xf
    v_med3_f32 v9, v8, v10, v9
    v_max_f32 v8, v8, v10
''' % (r, r))
    for op in ('v_permlane16_swap_b32', 'v_permlane32_swap_b32'):
        a('''
    v_mov_b32 v10, v8
    v_mov_b32 v11, v9
    %s v8, v10
    %s v9, v11
    v_max_f32 v9, v9, v11
    v_med3_f32 v9, v8, v10, v9
    v_max_f32 v8, v8, v10
''' % (op, op))
    a('''
    v_and_b32 v10, 0x7ff, v8
    v_and_b32 v11, 0x7ff, v9
    v_and_b32 v12, 1, v1
    v_cmp_eq_u32 vcc, 1, v12
    v_cndmask_b32 v12, v10, v11, vcc
    v_mul_u32_u24 v12, 0x700, v12
    v_lshl_add_u32 v12, v3, 4, v12
    s_lshl_b32 s18, s3, 7
    s_add_u32 s18, s18, %d
    v_add_u32 v12, s18, v12
''' % (WS_CROW + 896))
    vm.issue('global_load_dwordx4 %s, v12, s[16:17]' % vr(HB, 4))
    lh = vm.issue('global_load_dwordx4 %s, v12, s[16:17] offset:64' % vr(HB + 4, 4))
    a('''
    v_mul_u32_u24 v13, 0x700, v10
    v_mul_u32_u24 v14, 0x700, v11
    v_lshl_add_u32 v13, v0, 1, v13
    v_lshl_add_u32 v14, v0, 1, v14
    v_add_u32 v13, %d, v13
    v_add_u32 v14, %d, v14
''' % (WS_CROW, WS_CROW))
    vm.issue('global_load_ushort v16, v13, s[16:17]')
    vm.issue('global_load_ushort v17, v13, s[16:17] offset:896')
    vm.issue('global_load_ushort v18, v14, s[16:17]')
    lfin = vm.issue('global_load_ushort v19, v14, s[16:17] offset:896')
    for mat in range(2):
        for ks2 in range(2):
            vm.wait(lg[(mat, ks2)])
            R = GW + 16 * mat + 8 * ks2
            for e in range(2):
                for p in range(4):
                    a('v_perm_b32 v%d, v%d, v%d, %s' % (GF + 16 * mat + 8 * ks2 + 4 * e + p, R + 2 * p + 1, R + 2 * p, 's21' if e else 's20'))
    vm.wait(ldn)
    for e in range(4):
        for p in range(4):
            lo = DW + 2 * (2 * p) + (e >> 1)
            hi = DW + 2 * (2 * p + 1) + (e >> 1)
            a('v_perm_b32 v%d, v%d, v%d, %s' % (DFr + 4 * e + p, hi, lo, 's21' if e & 1 else 's20'))
    a('''
    s_lshl_b32 s18, s3, 8
    v_lshl_add_u32 v12, v2, 7, s18
    v_lshl_add_u32 v12, v3, 4, v12
    v_lshlrev_b32 v15, 2, v1
''')
    vm.wait(lh)
    for ks2 in range(2):
        for mat in range(2):
            for e in range(2):
                d = vr(GA + 8 * mat + 4 * e, 4)
                a('%s %s, %s, %s, %s' % (M16, d, vr(GF + 16 * mat + 8 * ks2 + 4 * e, 4), vr(HB + 4 * ks2, 4), '0' if ks2 == 0 else d))
    a('''
    s_mov_b32 exec_lo, 0x00030003
    s_mov_b32 exec_hi, 0x00030003
''')
    for mat in range(2):
        for e in range(2):
            a('ds_write_b128 v12, %s offset:%d' % (vr(GA + 8 * mat + 4 * e, 4), L_P + 1792 * mat + 64 * e))
    a('''
    s_mov_b64 exec, -1
    s_waitcnt lgkmcnt(0)
    s_barrier
    s_cmp_eq_u32 s3, 0
    s_cbranch_scc0 k3_skip
''')
    for mat in range(2):
        for kw in range(7):
            a('ds_read_b32 v%d, v15 offset:%d' % (GW + 8 * mat + kw, L_P + 1792 * mat + 256 * kw))
    a('''
    v_and_b32 v20, 15, v1
    v_bfe_u32 v21, v1, 4, 1
    v_lshl_add_u32 v20, v20, 1, v21
    v_lshrrev_b32 v21, 5, v1
    v_lshl_add_u32 v20, v21, 5, v20
    v_lshlrev_b32 v20, 1, v20
    s_waitcnt lgkmcnt(0)
''')
    for mat in range(2):
        g = GW + 8 * mat
        a('''
    v_add_f32 v%d, v%d, v%d
    v_add_f32 v%d, v%d, v%d
    v_add_f32 v%d, v%d, v%d
    v_add_f32 v%d, v%d, v%d
    v_add_f32 v%d, v%d, v%d
    v_add_f32 v%d, v%d, v%d
''' % (g, g, g + 1, g + 2, g + 2, g + 3, g + 4, g + 4, g + 5, g, g, g + 6, g + 2, g + 2, g + 4, g, g, g + 2))
    a('''
    v_cvt_pk_bf16_f32 v21, v%d, v%d
    v_lshlrev_b32 v22, 16, v21
    v_and_b32 v23, 0xffff0000, v21
    v_mul_f32 v21, %s, v22
    v_exp_f32 v21, v21
    v_add_f32 v21, 1.0, v21
    v_rcp_f32 v21, v21
    v_mul_f32 v21, v21, v22
    v_cvt_pk_bf16_f32 v21, v21, v21
    v_lshlrev_b32 v21, 16, v21
    v_mul_f32 v21, v21, v23
    v_cvt_pk_bf16_f32 v21, v21, v21
    ds_write_b16 v20, v21 offset:%d
    s_waitcnt lgkmcnt(0)
k3_skip:
    v_and_b32 v20, 1, v1
    v_lshlrev_b32 v20, 6, v20
    v_lshl_add_u32 v20, v3, 4, v20
    s_barrier
    ds_read_b128 %s, v20 offset:%d
''' % (GW, GW + 8, f32bits(-LOG2E), L_AB, vr(HB, 4), L_AB))
    a('''
    s_lshl_b32 s18, s3, 9
    v_lshl_add_u32 v12, v2, 8, s18
    v_lshl_add_u32 v12, v3, 4, v12
    v_and_b32 v20, 3, v1
    v_lshl_add_u32 v20, v20, 6, s18
    v_lshrrev_b32 v21, 2, v1
    v_lshl_add_u32 v20, v21, 2, v20
    v_lshlrev_b32 v21, 2, v0
    v_add_u32 v21, %d, v21
    s_waitcnt lgkmcnt(0)
''' % WS_YACC)
    for e in range(4):
        a('%s %s, %s, %s, 0' % (M16, vr(GA + 4 * e, 4), vr(DFr + 4 * e, 4), vr(HB, 4)))
    a('''
    s_mov_b32 exec_lo, 0x00030003
    s_mov_b32 exec_hi, 0x00030003
''')
    for e in range(4):
        a('ds_write_b128 v12, %s offset:%d' % (vr(GA + 4 * e, 4), L_Y + 64 * e))
    a('''
    s_mov_b64 exec, -1
    s_waitcnt lgkmcnt(0)
    ds_read_b32 v22, v20 offset:%d
    ds_read_b32 v23, v20 offset:%d
    s_waitcnt lgkmcnt(0)
    global_atomic_add_f32 v21, v22, s[16:17] sc1
    global_atomic_add_f32 v21, v23, s[16:17] offset:1792 sc1
    s_waitcnt vmcnt(0)
    s_barrier
    v_mov_b32 v24, 0
    s_cmp_eq_u32 s3, 0
    s_cbranch_scc0 k3_skip2
    s_mov_b64 exec, 1
    v_mov_b32 v22, %d
    v_mov_b32 v23, 1
    global_atomic_add v25, v22, v23, s[16:17] sc0 sc1
    s_waitcnt vmcnt(0)
    ds_write_b32 v24, v25 offset:%d
    s_waitcnt lgkmcnt(0)
    s_mov_b64 exec, -1
k3_skip2:
    s_barrier
    ds_read_b32 v25, v24 offset:%d
    s_waitcnt lgkmcnt(0)
    v_readfirstlane_b32 s18, v25
    s_cmp_eq_u32 s18, %d
    s_cbranch_scc0 k3_end
    global_load_dword v22, v21, s[16:17] sc1
    global_load_dword v23, v21, s[16:17] offset:1792 sc1
''' % (L_Y, L_Y + 256, WS_YACC + 3584, L_F, L_F, K3_GRID - 1))
    a('''
    v_cvt_pk_bf16_f32 v24, v8, v9
    v_lshlrev_b32 v25, 16, v24
    v_and_b32 v26, 0xffff0000, v24
    v_mul_f32 v25, %s, v25
    v_mul_f32 v26, %s, v26
    v_exp_f32 v25, v25
    v_exp_f32 v26, v26
    v_add_f32 v25, 1.0, v25
    v_add_f32 v26, 1.0, v26
    v_rcp_f32 v25, v25
    v_rcp_f32 v26, v26
    v_cvt_pk_bf16_f32 v24, v25, v26
    v_lshlrev_b32 v25, 16, v24
    v_and_b32 v26, 0xffff0000, v24
    v_lshlrev_b32 v16, 16, v16
    v_lshlrev_b32 v17, 16, v17
    v_lshlrev_b32 v18, 16, v18
    v_lshlrev_b32 v19, 16, v19
    v_mul_u32_u24 v13, 0x380, v10
    v_mul_u32_u24 v14, 0x380, v11
    v_lshl_add_u32 v13, v0, 1, v13
    v_lshl_add_u32 v14, v0, 1, v14
    s_waitcnt vmcnt(0)
    v_cvt_pk_bf16_f32 v24, v22, v23
    v_lshlrev_b32 v22, 16, v24
    v_and_b32 v23, 0xffff0000, v24
    v_mul_f32 v22, v22, v25
    v_mul_f32 v23, v23, v26
    v_cvt_pk_bf16_f32 v24, v22, v23
    v_lshlrev_b32 v22, 16, v24
    v_and_b32 v23, 0xffff0000, v24
    v_add_f32 v22, v22, v17
    v_add_f32 v23, v23, v19
    v_cvt_pk_bf16_f32 v24, v22, v23
    v_lshlrev_b32 v22, 16, v24
    v_and_b32 v23, 0xffff0000, v24
    v_add_f32 v22, v22, v16
    v_add_f32 v23, v23, v18
    v_cvt_pk_bf16_f32 v24, v22, v23
    global_store_short v13, v24, s[14:15]
    global_store_short_d16_hi v14, v24, s[14:15]
k3_end:
    s_endpgm
''' % (f32bits(-LOG2E), f32bits(-LOG2E)))
```

```python
import sys, os
sys.path.insert(0, os.path.dirname(os.path.abspath(__file__)))
from asmdsl import Asm
from common import *
import k1 as K1, k2 as K2, k3 as K3

HDR = '''; generated by gen/gen.py (hand-written generator); three launches:
;   k1: LN1 + QKV projection + wo re-layout, k2: attention + O-proj + LN2 + router, k3: top-2 SwiGLU
; @launch kernel=k1_kernel grid=(%d,1,1) block=(256,1,1) lds=%d
; @launch kernel=k2_kernel grid=(%d,1,1) block=(256,1,1) lds=%d
; @launch kernel=k3_kernel grid=(%d,1,1) block=(%d,1,1) lds=%d
.amdgcn_target "amdgcn-amd-amdhsa--gfx950"
.text
''' % (K1.K1_GRID, K1.K1_LDS, K2.K2_GRID, K2.K2_LDS, K3.K3_GRID, K3.K3_BLOCK, K3.K3_LDS)

def main(out):
    s = HDR
    for name, fn in (('k1_kernel', K1.k1), ('k2_kernel', K2.k2), ('k3_kernel', K3.k3)):
        a = Asm()
        fn(a)
        s += '.globl %s\n.p2align 8\n.type %s,@function\n' % (name, name) + a.finalize()
    s += '.section .rodata,"a"\n'
    s += kdesc('k1_kernel', 256, 256)
    s += kdesc('k2_kernel', 512, 256)
    s += kdesc('k3_kernel', 144, 144)
    open(out, 'w').write(s)

if __name__ == '__main__':
    main(sys.argv[1] if len(sys.argv) > 1 else 'sequential_preLN__grouped_kv_mqa__moe_arch_mod__prompt.s')
```

```python
import math

WS_Q = 0x000000
WS_KV = 0x200000
WS_KMAX = 0x240000
WS_QMAX = 0x241000
WS_WOF = 0x250000
WS_KEY = 0x2C0000
WS_YACC = 0x2C1000
WS_CROW = 0x400000

QSCALE = math.log2(math.e) / math.sqrt(28.0)


def f32bits(x):
    import struct
    return '0x%08x' % struct.unpack('<I', struct.pack('<f', x))[0]


def vr(base, n=1):
    return 'v%d' % base if n == 1 else 'v[%d:%d]' % (base, base + n - 1)


def ar(base, n=1):
    return 'a%d' % base if n == 1 else 'a[%d:%d]' % (base, base + n - 1)


def sr(base, n=1):
    return 's%d' % base if n == 1 else 's[%d:%d]' % (base, base + n - 1)


class VmTracker:
    def __init__(self, a):
        self.a = a
        self.n = 0
        self.done = 0

    def issue(self, text):
        self.a(text)
        self.n += 1
        return self.n - 1

    def wait(self, idx):
        if idx < self.done:
            return
        cnt = self.n - 1 - idx
        assert cnt >= 0
        if cnt > 63:
            cnt = 63
            raise AssertionError('vmcnt overflow')
        self.a('s_waitcnt vmcnt(%d)' % cnt)
        self.done = idx + 1

    def wait_all(self):
        self.a('s_waitcnt vmcnt(0)')
        self.done = self.n


def allreduce16(a, op, v, tmp=None):
    for r in (8, 4, 2, 1):
        a('%s_dpp %s, %s, %s row_ror:%d row_mask:0xf bank_mask:0xf' % (op, v, v, v, r))


def xreduce16(a, op, v, tmp):
    a('v_mov_b32 %s, %s' % (tmp, v))
    a('v_permlane16_swap_b32 %s, %s' % (v, tmp))
    a('%s %s, %s, %s' % (op, v, v, tmp))


def xreduce32(a, op, v, tmp):
    a('v_mov_b32 %s, %s' % (tmp, v))
    a('v_permlane32_swap_b32 %s, %s' % (v, tmp))
    a('%s %s, %s, %s' % (op, v, v, tmp))


def kdesc(name, nvgpr, accum, nsgpr=102):
    return '''.p2align 6
.amdhsa_kernel %s
  .amdhsa_next_free_vgpr %d
  .amdhsa_next_free_sgpr %d
  .amdhsa_accum_offset %d
  .amdhsa_group_segment_fixed_size 0
  .amdhsa_kernarg_size 104
  .amdhsa_user_sgpr_count 2
  .amdhsa_user_sgpr_kernarg_segment_ptr 1
  .amdhsa_system_sgpr_workgroup_id_x 1
.end_amdhsa_kernel
''' % (name, nvgpr, nsgpr, accum)


import os
DEBUG = int(os.environ.get('KDBG', '0'))
WS_DBG = 0x800000


class Stamps:
    def __init__(self, a, kidx, base=60):
        self.a, self.kidx, self.base, self.n = a, kidx, base, 0
        self.names = []

    def real(self, name):
        if not DEBUG:
            return
        self.a('s_memrealtime s[98:99]\ns_waitcnt lgkmcnt(0)\ns_mov_b32 s%d, s98' % (self.base + self.n))
        self.names.append(name)
        self.n += 1

    def __call__(self, name):
        if not DEBUG:
            return
        self.a('s_memtime s[98:99]\ns_waitcnt lgkmcnt(0)\ns_mov_b32 s%d, s98' % (self.base + self.n))
        self.names.append(name)
        self.n += 1

    def flush(self, ws, wave, v0='v0', v1='v1'):
        if not DEBUG:
            return
        a = self.a
        a('s_mov_b64 exec, -1')
        a('s_waitcnt vmcnt(0)')
        a('s_memtime s[98:99]\ns_waitcnt lgkmcnt(0)\ns_mov_b32 s%d, s98' % (self.base + self.n))
        a('s_memrealtime s[98:99]\ns_waitcnt lgkmcnt(0)\ns_mov_b32 s%d, s98' % (self.base + self.n + 1))
        a('s_getreg_b32 s%d, hwreg(HW_REG_XCC_ID)' % (self.base + self.n + 2))
        for i in range(self.n + 3):
            a('v_writelane_b32 %s, s%d, %d' % (v1, self.base + i, i))
        a('''
    s_lshl_b32 s98, s2, 3
    s_add_u32 s98, s98, %s
    s_lshl_b32 s98, s98, 7
    s_add_u32 s98, s98, %d
    v_mbcnt_lo_u32_b32 %s, -1, 0
    v_lshlrev_b32 %s, 2, %s
    v_add_u32 %s, s98, %s
    s_mov_b32 exec_hi, 0
    global_store_dword %s, %s, %s
''' % (wave, WS_DBG + self.kidx * 0x80000, v0, v0, v0, v0, v0, v0, v1, ws))
        open('stamps_k%d.txt' % self.kidx, 'w').write('\n'.join(self.names + ['end', 'end_real', 'xcc']) + '\n')
```

```python
from common import *

K1_GRID = 281
K1_LDS = 51200
X0, W0, ACC0, F0 = 20, 48, 160, 224
L_SUM, L_SQ = 49152, 50176


def k1(a):
    for cq in range(112):
        assert (cq * 147) >> 10 == cq // 7
    vm = VmTracker(a)
    st = Stamps(a, 1)
    a('''
k1_kernel:
    s_cmp_ge_u32 s2, %d
    s_cbranch_scc1 k1_end
''' % K1_GRID)
    st.real('start_real')
    st('start')
    a('''
    s_load_dwordx4 s[4:7], s[0:1], 0
    s_load_dwordx4 s[8:11], s[0:1], 16
    s_load_dwordx2 s[12:13], s[0:1], 32
    s_load_dwordx2 s[14:15], s[0:1], 96
    v_and_b32 v1, 63, v0
    v_lshrrev_b32 v5, 6, v0
    v_readfirstlane_b32 s18, v5
    s_mov_b32 s20, 0x05040100
    s_mov_b32 s21, 0x07060302
    s_mov_b32 s22, 0x3f803f80
    s_mov_b32 s23, 0xffff0000
    s_movk_i32 s30, 896
    s_cmp_ge_u32 s2, 256
    s_cbranch_scc1 k1_wo
    s_and_b32 s16, s2, 7
    s_lshr_b32 s19, s2, 5
    s_lshl_b32 s19, s19, 3
    s_add_u32 s16, s16, s19
    s_bfe_u32 s17, s2, 0x20003
    v_and_b32 v2, 31, v1
    v_lshrrev_b32 v3, 5, v1
    s_mul_i32 s19, s18, 224
    v_mul_u32_u24 v5, 0x380, v2
    v_lshl_add_u32 v5, v3, 4, v5
    v_add_u32 v5, s19, v5
    s_mul_i32 s19, s16, 28672
    s_waitcnt lgkmcnt(0)
    s_add_u32 s24, s4, s19
    s_addc_u32 s25, s5, 0
''')
    st('kernarg')
    xl = []
    for ks in range(7):
        xl.append(vm.issue('global_load_dwordx4 %s, v5, s[24:25] offset:%d' % (vr(X0 + 4 * ks, 4), 32 * ks)))
    a('''
    s_lshl_b32 s19, s18, 3
    v_add_u32 v4, s19, v2
    v_and_b32 v4, 31, v4
    s_mul_i32 s19, s18, 112
    v_lshl_add_u32 v12, v3, 3, s19
    s_lshl_b32 s19, s17, 8
    v_lshl_add_u32 v13, v4, 3, s19
    v_mad_u32_u24 v13, v12, s30, v13
    v_and_b32 v14, 7, v4
    v_min_u32 v14, 6, v14
    v_lshlrev_b32 v14, 3, v14
    v_mad_u32_u24 v14, v12, 56, v14
    s_cmp_eq_u32 s17, 3
    s_cselect_b32 s19, 16, 32
    v_cmp_le_u32 vcc, s19, v4
    v_cmp_le_u32 s[26:27], 24, v4
    v_mov_b32 v6, s8
    v_mov_b32 v15, s10
    v_mov_b32 v7, s9
    v_mov_b32 v16, s11
    v_cndmask_b32 v6, v6, v15, s[26:27]
    v_cndmask_b32 v7, v7, v16, s[26:27]
    v_mov_b32 v15, s6
    v_mov_b32 v16, s7
    v_cndmask_b32 v6, v15, v6, vcc
    v_cndmask_b32 v7, v16, v7, vcc
    v_cndmask_b32 v13, v13, v14, vcc
    v_mov_b32 v8, s30
    v_cndmask_b32 v8, v8, 56, vcc
    v_mov_b32 v9, 0
    v_mul_u32_u24 v10, 9, v8
    v_mov_b32 v11, 0
    v_add_co_u32 v6, vcc, v6, v13
    v_addc_co_u32 v7, vcc, 0, v7, vcc
''')
    wl = []
    for ks in range(7):
        for j in range(8):
            i = vm.issue('global_load_dwordx2 %s, v[6:7], off' % vr(W0 + 16 * ks + 2 * j, 2))
            if not (ks == 6 and j == 7):
                a('v_lshl_add_u64 v[6:7], %s, 0, v[6:7]' % ('v[10:11]' if j == 7 else 'v[8:9]'))
        wl.append(i)
    a('''
    s_lshl_b32 s19, s16, 15
    v_lshrrev_b32 v6, 3, v2
    v_lshl_add_u32 v6, v6, 13, s19
    v_and_b32 v7, 7, v2
    v_lshl_add_u32 v6, v7, 4, v6
    s_lshl_b32 s19, s17, 5
    s_lshl_b32 s26, s18, 3
    s_add_u32 s19, s19, s26
    v_lshl_add_u32 v7, v3, 2, s19
    s_movk_i32 s26, 147
''')
    for i in range(4):
        a('''
    v_add_u32 v8, %d, v7
    v_mul_u32_u24 v9, s26, v8
    v_lshrrev_b32 v9, 10, v9
    v_mad_i32_i24 v8, v9, -7, v8
    v_lshrrev_b32 v10, 2, v9
    v_lshl_add_u32 v%d, v10, 11, v6
    v_and_b32 v10, 3, v9
    v_lshl_add_u32 v%d, v10, 7, v%d
    v_lshrrev_b32 v10, 1, v8
    v_lshl_add_u32 v%d, v10, 9, v%d
    v_and_b32 v10, 1, v8
    v_lshl_add_u32 v%d, v10, 3, v%d
''' % (i, 12 + i, 12 + i, 12 + i, 12 + i, 12 + i, 12 + i, 12 + i))
    for g in (1, 2, 3):
        a('''
    s_add_u32 s19, s18, %d
    s_and_b32 s19, s19, 3
    s_mul_i32 s19, s19, 3
    s_add_u32 s19, s19, %d
    s_lshl_b32 s19, s19, 12
    v_lshl_add_u32 v%d, v1, 4, s19
''' % (g, g - 1, 15 + g))
    a('''
    s_mul_i32 s19, s18, 12288
    v_lshl_add_u32 v19, v1, 4, s19
    v_lshlrev_b32 v5, 5, v2
    s_lshl_b32 s19, s18, 3
    v_lshl_add_u32 v4, v3, 2, s19
    v_add_u32 v4, v4, v5
    v_mov_b32 v6, 0
    v_mov_b32 v7, 0
''')
    st('issued')
    vm.wait(xl[-1])
    st('x_arrived')
    for r in range(28):
        a('v_dot2c_f32_bf16 v%d, s22, v%d' % (6 + (r & 1), X0 + r))
    T = F0
    a('''
    v_add_f32 v6, v6, v7
    ds_write_b32 v4, v6 offset:%d
    s_waitcnt lgkmcnt(0)
    s_barrier
    ds_read_b128 %s, v5 offset:%d
    ds_read_b128 %s, v5 offset:%d
    v_mov_b32 v10, 0
    v_mov_b32 v11, 0
    s_waitcnt lgkmcnt(0)
    v_pk_add_f32 %s, %s, %s
    v_pk_add_f32 %s, %s, %s
    v_pk_add_f32 %s, %s, %s
    v_add_f32 v6, v%d, v%d
    v_mul_f32 v6, %s, v6
    v_cvt_pk_bf16_f32 v8, v6, v6
    v_lshlrev_b32 v8, 16, v8
    v_sub_f32 v6, v6, v8
''' % (L_SUM, vr(T, 4), L_SUM, vr(T + 4, 4), L_SUM + 16,
       vr(T, 2), vr(T, 2), vr(T + 2, 2),
       vr(T + 4, 2), vr(T + 4, 2), vr(T + 6, 2),
       vr(T, 2), vr(T, 2), vr(T + 4, 2),
       T, T + 1, f32bits(1.0 / 448)))
    st('mean')
    for ks in range(7):
        fs = F0 + 16 * (ks & 1)
        for r in range(4):
            R = X0 + 4 * ks + r
            tp = fs + 2 * r
            a('''
    v_lshlrev_b32 v%d, 16, v%d
    v_and_b32 v%d, s23, v%d
    v_pk_add_f32 %s, %s, v[8:9] op_sel_hi:[1,0] neg_lo:[0,1] neg_hi:[0,1]
    v_pk_fma_f32 v[10:11], %s, %s, v[10:11]
    v_cvt_pk_bf16_f32 v%d, v%d, v%d
''' % (tp, R, tp + 1, R, vr(tp, 2), vr(tp, 2), vr(tp, 2), vr(tp, 2), R, tp, tp + 1))
        vm.wait(wl[ks])
        if ks in (0, 6):
            st('w%d' % ks)
        for e in range(4):
            for p in range(4):
                lo = W0 + 16 * ks + 2 * (2 * p) + (e >> 1)
                hi = W0 + 16 * ks + 2 * (2 * p + 1) + (e >> 1)
                a('v_perm_b32 v%d, v%d, v%d, %s' % (fs + 4 * e + p, hi, lo, 's21' if e & 1 else 's20'))
        for e in range(4):
            acc = vr(ACC0 + 16 * e, 16)
            a('v_mfma_f32_32x32x16_bf16 %s, %s, %s, %s' % (acc, vr(fs + 4 * e, 4), vr(X0 + 4 * ks, 4), '0' if ks == 0 else acc))
    st('mfma_issued')
    a('''
    v_add_f32 v10, v10, v11
    ds_write_b32 v4, v10 offset:%d
''' % L_SQ)
    for e in range(4):
        for g in (1, 2, 3):
            a('ds_write_b128 v%d, %s offset:%d' % (15 + g, vr(ACC0 + 16 * e + 4 * g, 4), e * 1024))
    a('''
    s_waitcnt lgkmcnt(0)
    s_barrier
    ds_read_b128 %s, v5 offset:%d
    ds_read_b128 %s, v5 offset:%d
''' % (vr(T, 4), L_SQ, vr(T + 4, 4), L_SQ + 16))
    for src in range(3):
        for e in range(4):
            a('ds_read_b128 %s, v19 offset:%d' % (vr(W0 + 16 * src + 4 * e, 4), (src * 4 + e) * 1024))
    a('''
    s_waitcnt lgkmcnt(12)
    v_pk_add_f32 %s, %s, %s
    v_pk_add_f32 %s, %s, %s
    v_pk_add_f32 %s, %s, %s
    v_add_f32 v7, v%d, v%d
    v_mul_f32 v7, %s, v7
    v_fma_f32 v7, -v6, v6, v7
    v_cvt_pk_bf16_f32 v7, v7, v7
    v_lshlrev_b32 v7, 16, v7
    v_add_f32 v7, %s, v7
    v_cvt_pk_bf16_f32 v7, v7, v7
    v_lshlrev_b32 v7, 16, v7
    v_sqrt_f32 v7, v7
    v_cvt_pk_bf16_f32 v7, v7, v7
    v_lshlrev_b32 v7, 16, v7
    v_rcp_f32 v8, v7
''' % (vr(T, 2), vr(T, 2), vr(T + 2, 2),
       vr(T + 4, 2), vr(T + 4, 2), vr(T + 6, 2),
       vr(T, 2), vr(T, 2), vr(T + 4, 2),
       T, T + 1, f32bits(1.0 / 448), f32bits(1e-5)))
    st('xchg')
    a('''
    s_lshl_b32 s19, s17, 2
    s_add_u32 s19, s19, s18
    s_max_u32 s26, s19, 13
    s_sub_u32 s26, s26, 13
    s_cmp_eq_u32 s26, 0
    s_cselect_b32 s27, %s, 1.0
    v_mul_f32 v8, s27, v8
    s_lshl_b32 s27, s16, 6
    s_lshl_b32 s19, s19, 2
    s_add_u32 s27, s27, s19
    s_add_u32 s27, s27, %d
    s_mov_b32 s28, 0
    s_mov_b32 s29, -1
''' % (f32bits(QSCALE), WS_QMAX))
    for src in range(3):
        a('s_waitcnt lgkmcnt(%d)' % (8 - 4 * src))
        for e in range(4):
            for p in range(2):
                d = vr(ACC0 + 16 * e + 2 * p, 2)
                a('v_pk_add_f32 %s, %s, %s' % (d, d, vr(W0 + 16 * src + 4 * e + 2 * p, 2)))
    for e in range(4):
        for p in range(2):
            d = vr(ACC0 + 16 * e + 2 * p, 2)
            a('v_pk_mul_f32 %s, %s, v[8:9] op_sel_hi:[1,0]' % (d, d))
    N = F0
    for e in range(4):
        for p in range(2):
            d = vr(ACC0 + 16 * e + 2 * p, 2)
            n = vr(N + 2 * p, 2)
            if e == 0:
                a('v_pk_mul_f32 %s, %s, %s' % (n, d, d))
            else:
                a('v_pk_fma_f32 %s, %s, %s, %s' % (n, d, d, n))
    D = F0 + 8
    A = lambda e, i: ACC0 + 16 * e + i
    a('''
    s_cmp_eq_u32 s26, 2
    s_cbranch_scc1 k1_v
''')
    for i in range(4):
        a('v_cvt_pk_bf16_f32 v%d, v%d, v%d' % (D + 2 * i, A(0, i), A(1, i)))
        a('v_cvt_pk_bf16_f32 v%d, v%d, v%d' % (D + 2 * i + 1, A(2, i), A(3, i)))
    a('''
    s_cmp_eq_u32 s26, 1
    s_cbranch_scc1 k1_k
''')
    for i in range(4):
        a('global_store_dwordx2 v%d, %s, s[14:15]' % (12 + i, vr(D + 2 * i, 2)))
    a('''
    v_max3_f32 v6, v%d, v%d, v%d
    v_max_f32 v6, v6, v%d
''' % (N, N + 1, N + 2, N + 3))
    allreduce16(a, 'v_max_f32', 'v6')
    xreduce16(a, 'v_max_f32', 'v6', 'v7')
    xreduce32(a, 'v_max_f32', 'v6', 'v7')
    a('''
    v_mov_b32 v7, s27
    s_mov_b64 exec, 1
    global_store_dword v7, v6, s[14:15]
''')
    st('stored')
    st.flush('s[14:15]', 's18')
    a('s_endpgm')
    a('''
k1_k:
    v_mov_b32 v6, s22
    v_mov_b32 v7, 0x3f80
    v_cndmask_b32 v%d, v%d, v6, s[28:29]
    v_cndmask_b32 v%d, v%d, v7, s[28:29]
    v_cndmask_b32 v%d, v%d, 0, s[28:29]
    s_lshl_b32 s19, s16, 12
    s_add_u32 s19, s19, %d
    v_lshl_add_u32 v12, v2, 4, s19
    v_lshl_add_u32 v12, v3, 10, v12
''' % (D + 6, D + 6, D + 7, D + 7, N + 3, N + 3, WS_KV))
    for i in range(4):
        a('global_store_dwordx2 v12, %s, s[14:15] offset:%d' % (vr(D + 2 * i, 2), (i >> 1) * 512 + (i & 1) * 8))
    a('''
    v_add_f32 v6, v%d, v%d
    v_add_f32 v7, v%d, v%d
    v_add_f32 v6, v6, v7
''' % (N, N + 1, N + 2, N + 3))
    xreduce32(a, 'v_add_f32', 'v6', 'v7')
    allreduce16(a, 'v_max_f32', 'v6')
    xreduce16(a, 'v_max_f32', 'v6', 'v7')
    a('''
    s_lshl_b32 s19, s16, 2
    s_add_u32 s19, s19, %d
    v_mov_b32 v7, s19
    v_mov_b32 v8, s27
    v_mov_b32 v9, 0
    s_mov_b64 exec, 1
    global_store_dword v7, v6, s[14:15]
    global_store_dword v8, v9, s[14:15]
    s_endpgm
''' % WS_KMAX)
    a('''
k1_v:
    v_cndmask_b32 v%d, v%d, 1.0, s[28:29]
    v_cndmask_b32 v%d, v%d, 0, s[28:29]
    v_cndmask_b32 v%d, v%d, 0, s[28:29]
    v_cndmask_b32 v%d, v%d, 0, s[28:29]
    s_lshl_b32 s19, s16, 12
    s_add_u32 s19, s19, %d
    v_lshrrev_b32 v6, 4, v2
    v_lshl_add_u32 v12, v6, 10, s19
    v_bfe_u32 v6, v2, 2, 1
    v_lshl_add_u32 v12, v6, 9, v12
    v_lshl_add_u32 v12, v3, 8, v12
    v_bfe_u32 v6, v2, 3, 1
    v_lshl_add_u32 v12, v6, 3, v12
    v_and_b32 v6, 3, v2
    v_lshl_add_u32 v12, v6, 1, v12
''' % (A(0, 3), A(0, 3), A(1, 3), A(1, 3), A(2, 3), A(2, 3), A(3, 3), A(3, 3), WS_KV + 2048))
    for i in range(4):
        a('v_cvt_pk_bf16_f32 v%d, v%d, v%d' % (D + 2 * i, A(0, i), A(1, i)))
        a('v_cvt_pk_bf16_f32 v%d, v%d, v%d' % (D + 2 * i + 1, A(2, i), A(3, i)))
    for i in range(4):
        for e in range(4):
            op = 'global_store_short_d16_hi' if e & 1 else 'global_store_short'
            a('%s v12, v%d, s[14:15] offset:%d' % (op, D + 2 * i + (e >> 1), 64 * i + 16 * e))
    a('''
    v_max3_f32 v6, v%d, v%d, v%d
    v_max_f32 v6, v6, v%d
''' % (N, N + 1, N + 2, N + 3))
    allreduce16(a, 'v_max_f32', 'v6')
    xreduce16(a, 'v_max_f32', 'v6', 'v7')
    xreduce32(a, 'v_max_f32', 'v6', 'v7')
    a('''
    v_mov_b32 v8, %s
    v_mov_b32 v9, 0x7f800000
    v_cmp_nle_f32 vcc, v6, v8
    v_cndmask_b32 v6, 0, v9, vcc
    v_mov_b32 v7, s27
    s_mov_b64 exec, 1
    global_store_dword v7, v6, s[14:15]
    s_endpgm
''' % f32bits(2.0 ** 80))
    a('''
k1_wo:
    s_sub_u32 s16, s2, 256
    s_lshl_b32 s16, s16, 2
    s_add_u32 s16, s16, s18
    s_cmp_ge_u32 s16, 98
    s_cbranch_scc1 k1_zero
    s_mul_i32 s17, s16, 147
    s_lshr_b32 s17, s17, 10
    s_mul_i32 s19, s17, 7
    s_sub_u32 s16, s16, s19
    v_and_b32 v2, 15, v1
    v_lshrrev_b32 v3, 4, v1
    v_mul_u32_u24 v4, 0x1c00, v3
    v_lshl_add_u32 v4, v2, 3, v4
    v_add_u32 v5, 0xe00, v4
    s_mul_i32 s19, s17, 28672
    s_lshl_b32 s26, s16, 7
    s_add_u32 s19, s19, s26
    s_waitcnt lgkmcnt(0)
    s_add_u32 s24, s12, s19
    s_addc_u32 s25, s13, 0
''')
    for j in range(8):
        a('global_load_dwordx2 %s, %s, s[24:25] offset:%d' % (vr(W0 + 2 * j, 2), 'v4' if j < 4 else 'v5', (j & 3) * 896))
    a('''
    s_mul_i32 s19, s17, 7168
    s_add_u32 s19, s19, %d
    s_lshl_b32 s26, s16, 2
    v_lshrrev_b32 v6, 2, v2
    v_add_u32 v6, s26, v6
    v_mul_u32_u24 v7, 37, v6
    v_lshrrev_b32 v7, 8, v7
    v_mul_u32_u24 v7, 0x16c00, v7
    v_lshl_add_u32 v6, v6, 10, s19
    v_add_u32 v6, v6, v7
    v_and_b32 v7, 3, v2
    v_lshl_add_u32 v6, v7, 6, v6
    v_lshl_add_u32 v6, v3, 8, v6
    s_waitcnt vmcnt(0)
''' % WS_WOF)
    for e in range(4):
        for p in range(4):
            lo = W0 + 2 * (2 * p) + (e >> 1)
            hi = W0 + 2 * (2 * p + 1) + (e >> 1)
            a('v_perm_b32 v%d, v%d, v%d, %s' % (F0 + 4 * e + p, hi, lo, 's21' if e & 1 else 's20'))
    for e in range(4):
        a('global_store_dwordx4 v6, %s, s[14:15] offset:%d' % (vr(F0 + 4 * e, 4), 16 * e))
    a('''
    s_endpgm
k1_zero:
    s_cmp_eq_u32 s16, 98
    s_cbranch_scc0 k1_end
    v_mov_b32 v4, 0
    v_mov_b32 v5, 0
    v_mov_b32 v6, 0
    v_mov_b32 v7, 0
    v_lshlrev_b32 v2, 4, v1
    v_add_u32 v2, %d, v2
    s_waitcnt lgkmcnt(0)
''' % WS_YACC)
    for i in range(4):
        a('global_store_dwordx4 v2, v[4:7], s[14:15] offset:%d' % (1024 * i))
    a('''
k1_end:
    s_endpgm
''')
```

```python
from common import *

K2_GRID = 256
K2_LDS = 65536
O0, Q0, S0, P0, KB0, VB0, FR0 = 16, 80, 112, 144, 152, 176, 200
L_O, L_A, L_KEY = 49152, 57344, 65280
OSTR = 912
M32 = 'v_mfma_f32_32x32x16_bf16'
M16 = 'v_mfma_f32_16x16x32_bf16'

WO_START = 8
WO_END = 60


def frag_reg(f):
    if f < 64:
        return ar(4 * f, 4)
    if f < 78:
        return vr(FR0 + 4 * (f - 64), 4)
    g = f - 78
    if g < 6:
        return vr(KB0 + 4 * g, 4)
    if g < 12:
        return vr(VB0 + 4 * (g - 6), 4)
    return vr(S0 + 4 * (g - 12), 4)


def k2(a):
    vm = VmTracker(a)
    st = Stamps(a, 2)
    Ob = lambda b: vr(O0 + 16 * b, 16)
    Qf = lambda b, s: vr(Q0 + 8 * b + 4 * s, 4)
    Sb = lambda n: S0 + 16 * (n & 1)
    Kf = lambda t, s: vr(KB0 + 8 * (t % 3) + 4 * s, 4)
    Vf = lambda t, u: vr(VB0 + 8 * (t % 3) + 4 * u, 4)
    soff = lambda t: 's%d' % (11 + t % 3)

    def tile_off(t):
        a('''
    s_add_u32 %s, s9, %d
    s_and_b32 %s, %s, 15
    s_lshl_b32 %s, %s, 12
    s_add_u32 %s, %s, s10
''' % (soff(t), t, soff(t), soff(t), soff(t), soff(t), soff(t), soff(t)))

    ld = {}

    def load_k(t):
        for s in range(2):
            ld[('k', t)] = vm.issue('buffer_load_dwordx4 %s, v1, s[4:7], %s offen offset:%d' % (Kf(t, s), soff(t), 1024 * s))

    def load_v(t):
        for u in range(2):
            ld[('v', t)] = vm.issue('buffer_load_dwordx4 %s, v1, s[4:7], %s offen offset:%d' % (Vf(t, u), soff(t), 2048 + 1024 * u))

    wo_state = {'blk': -1}

    def load_wo(f):
        if (f >> 2) != wo_state['blk']:
            wo_state['blk'] = f >> 2
            a('s_mov_b32 s96, 0x%x' % (WS_WOF + (f >> 2) * 4096))
        ld[('w', f)] = vm.issue('buffer_load_dwordx4 %s, v2, s[4:7], s96 offen offset:%d' % (frag_reg(f), (f & 3) * 1024))

    a('''
k2_kernel:
    s_cmp_ge_u32 s2, %d
    s_cbranch_scc1 k2_end
''' % K2_GRID)
    st.real('start_real')
    st('start')
    a('''
    s_load_dwordx2 s[14:15], s[0:1], 96
    v_and_b32 v3, 63, v0
    v_lshrrev_b32 v4, 6, v0
    v_readfirstlane_b32 s3, v4
    v_lshlrev_b32 v1, 4, v3
    s_mov_b32 s6, 0x10000000
    s_mov_b32 s7, 0x00020000
    s_mov_b32 s8, 0
    s_bfe_u32 s9, s2, 0x40003
    s_lshl_b32 s10, s3, 16
    s_add_u32 s10, s10, %d
    s_mul_i32 s96, s3, 100352
    v_add_u32 v2, s96, v1
    s_lshl_b32 s97, s2, 13
    s_waitcnt lgkmcnt(0)
    s_mov_b32 s4, s14
    s_mov_b32 s5, s15
''' % WS_KV)
    for b in range(4):
        a('''
    s_add_u32 s96, s3, %d
    s_and_b32 s96, s96, 3
    s_lshl_b32 s96, s96, 11
    s_add_u32 s96, s96, s97
''' % b)
        for s in range(2):
            ld['q'] = vm.issue('buffer_load_dwordx4 %s, v1, s[4:7], s96 offen offset:%d' % (Qf(b, s), 1024 * s))
    a('''
    s_add_u32 s98, s14, %d
    s_addc_u32 s99, s15, 0
    s_lshr_b32 s96, s2, 2
    s_lshl_b32 s96, s96, 6
    s_add_u32 s100, s98, s96
    s_addc_u32 s101, s99, 0
    s_load_dwordx16 s[16:31], s[100:101], %d
    s_load_dwordx16 s[32:47], s[98:99], 0
''' % (WS_KMAX, WS_QMAX - WS_KMAX))
    if not DEBUG:
        a('''
    s_load_dwordx16 s[48:63], s[98:99], 64
    s_load_dwordx16 s[64:79], s[98:99], 128
    s_load_dwordx16 s[80:95], s[98:99], 192
''')
    tile_off(0)
    load_k(0)
    load_v(0)
    vm.wait(ld['q'])
    st('q_arrived')
    a('s_mov_b32 exec_lo, 0')
    for b in range(4):
        a('v_mov_b32 v%d, 0' % (Q0 + 8 * b + 6))
        a('v_mov_b32 v%d, 0' % (Q0 + 8 * b + 7))
    a('s_mov_b64 exec, -1')
    a('s_branch k2_go')
    a('k2_restart:')
    tile_off(0)
    for s in range(2):
        a('buffer_load_dwordx4 %s, v1, s[4:7], %s offen offset:%d' % (Kf(0, s), soff(0), 1024 * s))
    for u in range(2):
        a('buffer_load_dwordx4 %s, v1, s[4:7], %s offen offset:%d' % (Vf(0, u), soff(0), 2048 + 1024 * u))
    a('k2_go:')
    for t in (1, 2):
        tile_off(t)
        load_k(t)
        load_v(t)
    a('''
    s_lshr_b32 s96, s2, 3
    s_lshl_b32 s96, s96, 2
    s_add_u32 s96, s96, s3
    s_mul_i32 s96, s96, 3136
    s_add_u32 s96, s96, %d
''' % WS_WOF)
    for i in range(4):
        vm.issue('buffer_load_dwordx4 %s, v1, s[4:7], s96 offen offset:%d' % (vr(FR0 + 4 * i, 4), 1024 * i))
    vm.wait(ld[('k', 0)])
    st('k0_arrived')
    a('%s %s, %s, %s, 0' % (M32, vr(Sb(0), 16), Kf(0, 0), Qf(0, 0)))
    a('%s %s, %s, %s, %s' % (M32, vr(Sb(0), 16), Kf(0, 1), Qf(0, 1), vr(Sb(0), 16)))

    side = {}

    def at(n, g, fn):
        side.setdefault((n, g), []).append(fn)

    for t in range(3, 16):
        at(4 * (t - 3) + 3, 0, lambda t=t: (tile_off(t), load_k(t)))
        at(4 * (t - 3) + 4, 2, lambda t=t: load_v(t))
    nwo = 78
    pos = [(n, g) for n in range(WO_START, WO_END) for g in (1, 3)]
    for f in range(nwo):
        n, g = pos[(f * len(pos)) // nwo]
        at(n, g, lambda f=f: load_wo(f))
    for t, n in ((13, 55), (14, 59)):
        pass
    chain = ['s_waitcnt lgkmcnt(0)']
    chain += ['s_max_u32 s16, s16, s%d' % i for i in range(17, 32)]
    chain += ['s_max_u32 s32, s32, s%d' % i for i in range(33, 48 if DEBUG else 96)]
    per = 7
    cpos = [(n, g) for n in range(1, 5) for g in range(4)]
    for i in range(0, len(chain), per):
        n, g = cpos[i // per]
        at(n, g, lambda c=chain[i:i + per]: a('\n'.join(c)))

    def check():
        a('''
    v_mov_b32 v3, s16
    v_mul_f32 v3, s32, v3
    v_mov_b32 v4, %s
    v_cmp_nle_f32 vcc, v3, v4
    s_cmp_eq_u32 s8, 0
    s_cselect_b64 vcc, vcc, 0
    s_cbranch_vccnz k2_fallback
    s_load_dwordx2 s[16:17], s[0:1], 0
    s_load_dwordx2 s[18:19], s[0:1], 48
    s_load_dwordx2 s[20:21], s[0:1], 80
''' % f32bits(64.0 * 64.0 / (7.0 * 1.05)))
    at(5, 0, check)

    def group(n, g):
        s = Sb(n)
        for fn in side.get((n, g), []):
            fn()
        for j in range(4):
            a('v_exp_f32 v%d, v%d' % (s + 4 * g + j, s + 4 * g + j))
        for j in range(2):
            a('v_cvt_pk_bf16_f32 v%d, v%d, v%d' % (P0 + 2 * g + j, s + 4 * g + 2 * j, s + 4 * g + 2 * j + 1))

    for n in range(64):
        t, b = n >> 2, n & 3
        if n % 8 == 0 and n:
            st('slot%d' % n)
        t1, b1 = (n + 1) >> 2, (n + 1) & 3
        tm, bm = (n - 1) >> 2, (n - 1) & 3
        if n + 1 < 64:
            vm.wait(ld[('k', t1)])
            a('%s %s, %s, %s, 0' % (M32, vr(Sb(n + 1), 16), Kf(t1, 0), Qf(b1, 0)))
        group(n, 0)
        if n > 0:
            a('%s %s, %s, %s, %s' % (M32, Ob(bm), Vf(tm, 1), vr(P0 + 4, 4), Ob(bm)))
        group(n, 1)
        if n + 1 < 64:
            a('%s %s, %s, %s, %s' % (M32, vr(Sb(n + 1), 16), Kf(t1, 1), Qf(b1, 1), vr(Sb(n + 1), 16)))
        group(n, 2)
        vm.wait(ld[('v', t)])
        a('%s %s, %s, %s, %s' % (M32, Ob(b), Vf(t, 0), vr(P0, 4), '0' if t == 0 else Ob(b)))
        group(n, 3)
    a('%s %s, %s, %s, %s' % (M32, Ob(3), Vf(15, 1), vr(P0 + 4, 4), Ob(3)))
    st('loop_end')
    late = list(range(78, 84)) + list(range(90, 98)) + [86, 87, 88, 89]
    for f in late:
        load_wo(f)
    a('''
    v_and_b32 v3, 31, v0
    v_lshrrev_b32 v4, 5, v0
    v_lshlrev_b32 v5, 5, v3
    s_lshl_b32 s22, s2, 3
    v_add_u32 v6, s22, v4
    v_mul_u32_u24 v7, 0x380, v6
    v_add_u32 v7, v7, v5
    s_mov_b32 s24, 0x0fffffff
    s_mov_b32 s25, 0x0fffffff
    s_mov_b32 s23, 0xffff0000
''')
    for g in (1, 2, 3):
        a('''
    s_add_u32 s96, s3, %d
    s_and_b32 s96, s96, 3
    s_mul_i32 s96, s96, 3
    s_add_u32 s96, s96, %d
    s_lshl_b32 s96, s96, 12
    v_add_u32 v%d, s96, v1
''' % (g, g - 1, 7 + g))
    wo_state['blk'] = -1
    a('''
    s_mul_i32 s96, s3, 12288
    v_add_u32 v11, s96, v1
''')
    for g in (1, 2, 3):
        for q in range(4):
            a('ds_write_b128 v%d, %s offset:%d' % (7 + g, vr(O0 + 16 * g + 4 * q, 4), q * 1024))
    load_wo(84)
    load_wo(85)
    for i in range(8):
        a('v_mov_b32 v%d, 0' % (P0 + i))
    a('''
    s_waitcnt lgkmcnt(0)
    s_mov_b64 exec, s[24:25]
''')
    ld['x0'] = vm.issue('global_load_dwordx4 %s, v7, s[16:17]' % vr(P0, 4))
    ld['x'] = vm.issue('global_load_dwordx4 %s, v7, s[16:17] offset:16' % vr(P0 + 4, 4))
    a('''
    s_mov_b64 exec, -1
    s_barrier
''')
    for src in range(3):
        for q in range(4):
            a('ds_read_b128 %s, v11 offset:%d' % (vr(O0 + 16 * (src + 1) + 4 * q, 4), (src * 4 + q) * 1024))
    a('''
    v_and_b32 v8, 7, v0
    v_mul_u32_u24 v8, %d, v8
    v_bfe_u32 v9, v0, 3, 2
    v_mul_u32_u24 v9, 56, v9
    v_add_u32 v8, v8, v9
    v_bfe_u32 v9, v0, 5, 1
    v_lshl_add_u32 v8, v9, 3, v8
    s_mul_i32 s96, s3, 224
    v_add_u32 v8, s96, v8
    v_and_b32 v9, 7, v0
    v_mul_u32_u24 v9, %d, v9
    v_bfe_u32 v10, v0, 4, 2
    v_lshl_add_u32 v11, v10, 3, v9
    v_add_u32 v11, s96, v11
    v_lshl_add_u32 v9, v10, 4, v9
''' % (OSTR, OSTR))
    for src in range(3):
        a('s_waitcnt lgkmcnt(%d)' % (8 - 4 * src))
        for p in range(8):
            d = vr(O0 + 2 * p, 2)
            a('v_pk_add_f32 %s, %s, %s' % (d, d, vr(O0 + 16 * (src + 1) + 2 * p, 2)))
    a('''
    v_mov_b32 v12, v%d
    v_mov_b32 v13, v%d
    v_permlane32_swap_b32 v12, v13
    v_rcp_f32 v12, v13
''' % (O0 + 12, O0 + 12))
    for p in range(8):
        d = vr(O0 + 2 * p, 2)
        a('v_pk_mul_f32 %s, %s, v[12:13] op_sel_hi:[1,0]' % (d, d))
    for p in range(8):
        a('v_cvt_pk_bf16_f32 v%d, v%d, v%d' % (O0 + 16 + p, O0 + 2 * p, O0 + 2 * p + 1))
    for g in range(3):
        a('ds_write_b64 v8, %s offset:%d' % (vr(O0 + 16 + 2 * g, 2), L_O + 16 * g))
    a('''
    s_mov_b32 exec_hi, 0
    ds_write_b64 v8, %s offset:%d
    s_mov_b64 exec, -1
    s_waitcnt lgkmcnt(0)
    s_barrier
''' % (vr(O0 + 22, 2), L_O + 48))
    B0 = O0
    st('combined')
    for ks in range(14):
        a('ds_read_b128 %s, v9 offset:%d' % (vr(B0 + 4 * ks, 4), L_O + 64 * ks))
    WR = 72
    for i in range(8):
        a('v_mov_b32 v%d, 0' % (WR + i))
    a('s_mov_b64 exec, s[24:25]')
    vm.issue('global_load_dwordx4 %s, v5, s[18:19]' % vr(WR, 4))
    ld['wr'] = vm.issue('global_load_dwordx4 %s, v5, s[18:19] offset:16' % vr(WR + 4, 4))
    a('s_mov_b64 exec, -1')
    D0 = Q0
    for ks in range(14):
        a('s_waitcnt lgkmcnt(%d)' % (13 - ks))
        for tt in range(7):
            f = ks * 7 + tt
            vm.wait(ld[('w', f)])
            d = vr(D0 + 4 * tt, 4)
            a('%s %s, %s, %s, %s' % (M16, d, frag_reg(f), vr(B0 + 4 * ks, 4), '0' if ks == 0 else d))
    st('oproj')
    a('s_mov_b32 exec_lo, 0x00ff00ff')
    a('s_mov_b32 exec_hi, 0x00ff00ff')
    for tt in range(7):
        a('v_cvt_pk_bf16_f32 v%d, v%d, v%d' % (B0 + 2 * tt, D0 + 4 * tt, D0 + 4 * tt + 1))
        a('v_cvt_pk_bf16_f32 v%d, v%d, v%d' % (B0 + 2 * tt + 1, D0 + 4 * tt + 2, D0 + 4 * tt + 3))
        a('ds_write_b64 v11, %s offset:%d' % (vr(B0 + 2 * tt, 2), L_A + 32 * tt))
    AP = 32
    a('s_mov_b64 exec, -1')
    for i in range(8):
        a('v_mov_b32 v%d, 0' % (AP + i))
    a('''
    v_mul_u32_u24 v8, %d, v4
    v_add_u32 v8, v8, v5
    s_waitcnt lgkmcnt(0)
    s_barrier
    s_mov_b64 exec, s[24:25]
    ds_read_b128 %s, v8 offset:%d
    ds_read_b128 %s, v8 offset:%d
    s_mov_b64 exec, -1
''' % (OSTR, vr(AP, 4), L_A, vr(AP + 4, 4), L_A + 16))
    st('attn_lds')
    HF = 80
    HP = 40
    DF = 96
    NP = 48
    OP = 56
    vm.wait(ld['wr'])
    for p in range(8):
        a('''
    v_lshlrev_b32 v%d, 16, v%d
    v_and_b32 v%d, s23, v%d
''' % (HF + 2 * p, P0 + p, HF + 2 * p + 1, P0 + p))
    a('s_waitcnt lgkmcnt(0)')
    for p in range(8):
        h2, d2 = vr(HF + 2 * p, 2), vr(DF + 2 * p, 2)
        a('''
    v_lshlrev_b32 v%d, 16, v%d
    v_and_b32 v%d, s23, v%d
    v_pk_add_f32 %s, %s, %s
    v_cvt_pk_bf16_f32 v%d, v%d, v%d
    v_lshlrev_b32 v%d, 16, v%d
    v_and_b32 v%d, s23, v%d
''' % (DF + 2 * p, AP + p, DF + 2 * p + 1, AP + p, h2, h2, d2, HP + p, HF + 2 * p, HF + 2 * p + 1,
       HF + 2 * p, HP + p, HF + 2 * p + 1, HP + p))
    a('v_pk_add_f32 v[12:13], %s, %s' % (vr(HF, 2), vr(HF + 2, 2)))
    a('v_pk_add_f32 v[14:15], %s, %s' % (vr(HF + 4, 2), vr(HF + 6, 2)))
    for p in range(4, 8, 2):
        a('v_pk_add_f32 v[12:13], v[12:13], %s' % vr(HF + 2 * p, 2))
        a('v_pk_add_f32 v[14:15], v[14:15], %s' % vr(HF + 2 * p + 2, 2))
    a('''
    v_pk_add_f32 v[12:13], v[12:13], v[14:15]
    v_add_f32 v12, v12, v13
''')
    allreduce16(a, 'v_add_f32', 'v12')
    xreduce16(a, 'v_add_f32', 'v12', 'v13')
    a('''
    v_mul_f32 v12, %s, v12
    v_cvt_pk_bf16_f32 v14, v12, v12
    v_lshlrev_b32 v14, 16, v14
    v_sub_f32 v12, v12, v14
    v_mov_b32 v10, 0
    v_mov_b32 v11, 0
    s_mov_b64 exec, s[24:25]
''' % f32bits(1.0 / 448))
    for p in range(8):
        h2, d2 = vr(HF + 2 * p, 2), vr(DF + 2 * p, 2)
        a('''
    v_pk_add_f32 %s, %s, v[14:15] op_sel_hi:[1,0] neg_lo:[0,1] neg_hi:[0,1]
    v_pk_fma_f32 v[10:11], %s, %s, v[10:11]
''' % (d2, h2, d2, d2))
    a('''
    s_mov_b64 exec, -1
    v_add_f32 v10, v10, v11
''')
    allreduce16(a, 'v_add_f32', 'v10')
    xreduce16(a, 'v_add_f32', 'v10', 'v11')
    for p in range(8):
        a('''
    v_cvt_pk_bf16_f32 v%d, v%d, v%d
    v_lshlrev_b32 v%d, 16, v%d
    v_and_b32 v%d, s23, v%d
''' % (NP + p, DF + 2 * p, DF + 2 * p + 1, DF + 2 * p, NP + p, DF + 2 * p + 1, NP + p))
    a('''
    v_mul_f32 v10, %s, v10
    v_fma_f32 v10, -v12, v12, v10
    v_cvt_pk_bf16_f32 v10, v10, v10
    v_lshlrev_b32 v10, 16, v10
    v_add_f32 v10, %s, v10
    v_cvt_pk_bf16_f32 v10, v10, v10
    v_lshlrev_b32 v10, 16, v10
    v_sqrt_f32 v10, v10
    v_cvt_pk_bf16_f32 v10, v10, v10
    v_lshlrev_b32 v10, 16, v10
    v_rcp_f32 v10, v10
    v_mov_b32 v12, 0
    v_mov_b32 v13, 0
''' % (f32bits(1.0 / 448), f32bits(1e-5)))
    for p in range(8):
        d2 = vr(DF + 2 * p, 2)
        a('''
    v_pk_mul_f32 %s, %s, v[10:11] op_sel_hi:[1,0]
    v_cvt_pk_bf16_f32 v%d, v%d, v%d
''' % (d2, d2, NP + p, DF + 2 * p, DF + 2 * p + 1))
    for p in range(8):
        a('v_dot2c_f32_bf16 v%d, v%d, v%d' % (12 + (p & 1), NP + p, WR + p))
    for p in range(8):
        h2, d2 = vr(HF + 2 * p, 2), vr(DF + 2 * p, 2)
        a('''
    v_lshlrev_b32 v%d, 16, v%d
    v_and_b32 v%d, s23, v%d
    v_pk_add_f32 %s, %s, %s
    v_cvt_pk_bf16_f32 v%d, v%d, v%d
''' % (DF + 2 * p, NP + p, DF + 2 * p + 1, NP + p, d2, d2, h2, OP + p, DF + 2 * p, DF + 2 * p + 1))
    a('''
    s_mov_b64 exec, s[24:25]
    global_store_dwordx4 v7, %s, s[20:21]
    global_store_dwordx4 v7, %s, s[20:21] offset:16
    s_mov_b64 exec, -1
    v_add_f32 v12, v12, v13
''' % (vr(OP, 4), vr(OP + 4, 4)))
    allreduce16(a, 'v_add_f32', 'v12')
    xreduce16(a, 'v_add_f32', 'v12', 'v13')
    a('''
    v_and_b32 v12, 0xfffff800, v12
    v_or_b32 v12, v12, v6
    v_lshlrev_b32 v13, 2, v4
    v_mov_b32 v14, 0
    ds_write_b32 v13, v12 offset:%d
    v_lshlrev_b32 v7, 1, v7
    v_sub_u32 v7, v7, v5
    v_add_u32 v7, %d, v7
    s_waitcnt lgkmcnt(0)
    s_barrier
    ds_read_b128 v[16:19], v14 offset:%d
    ds_read_b128 v[20:23], v14 offset:%d
    s_waitcnt lgkmcnt(0)
    v_max_f32 v24, v16, v17
    v_min_f32 v25, v16, v17
''' % (L_KEY, WS_CROW, L_KEY, L_KEY + 16))
    for i in range(18, 24):
        a('v_med3_f32 v25, v24, v25, v%d' % i)
        a('v_max_f32 v24, v24, v%d' % i)
    a('''
    v_cmp_ge_f32 vcc, v12, v25
    s_and_b64 exec, vcc, s[24:25]
    s_cbranch_execz k2_nocand
    global_store_dwordx4 v7, %s, s[14:15]
    global_store_dwordx4 v7, %s, s[14:15] offset:16
    global_store_dwordx4 v7, %s, s[14:15] offset:896
    global_store_dwordx4 v7, %s, s[14:15] offset:912
k2_nocand:
    s_cmp_eq_u32 s3, 0
    s_cbranch_scc0 k2_fin
    s_mov_b64 exec, 1
    s_lshl_b32 s96, s2, 3
    s_add_u32 s96, s96, %d
    v_mov_b32 v13, s96
    global_store_dwordx2 v13, v[24:25], s[14:15]
k2_fin:
''' % (vr(HP, 4), vr(HP + 4, 4), vr(NP, 4), vr(NP + 4, 4), WS_KEY))
    st('stored')
    st.flush('s[14:15]', 's3')
    a('''
k2_end:
    s_endpgm
''')

    MX = P0
    a('''
k2_fallback:
    s_waitcnt vmcnt(0)
    s_mov_b32 s8, 1
    s_mov_b32 s96, 0
''')
    for b in range(4):
        a('v_mov_b32 v%d, 0xff800000' % (MX + b))
    a('''
k2_fb_loop:
    s_add_u32 s11, s96, s10
    buffer_load_dwordx4 %s, v1, s[4:7], s11 offen
    buffer_load_dwordx4 %s, v1, s[4:7], s11 offen offset:1024
    s_waitcnt vmcnt(0)
''' % (Kf(0, 0), Kf(0, 1)))
    for b in range(4):
        s = Sb(b)
        a('%s %s, %s, %s, 0' % (M32, vr(s, 16), Kf(0, 0), Qf(b, 0)))
        a('%s %s, %s, %s, %s' % (M32, vr(s, 16), Kf(0, 1), Qf(b, 1), vr(s, 16)))
        for j in range(8):
            a('v_max3_f32 v%d, v%d, v%d, v%d' % (MX + b, MX + b, s + 2 * j, s + 2 * j + 1))
    a('''
    s_add_u32 s96, s96, 4096
    s_cmp_lt_u32 s96, 65536
    s_cbranch_scc1 k2_fb_loop
''')
    a('''
    v_and_b32 v3, 31, v0
    v_lshlrev_b32 v3, 4, v3
    s_lshl_b32 s96, s3, 2
    v_add_u32 v4, s96, v3
''')
    for b in range(4):
        xreduce32(a, 'v_max_f32', 'v%d' % (MX + b), 'v5')
        a('''
    s_add_u32 s96, s3, %d
    s_and_b32 s96, s96, 3
    s_lshl_b32 s96, s96, 9
    v_add_u32 v%d, s96, v4
    v_add_u32 v%d, s96, v3
    ds_write_b32 v%d, v%d
''' % (b, 6, 8 + b, 6, MX + b))
    a('''
    s_waitcnt lgkmcnt(0)
    s_barrier
''')
    for b in range(4):
        a('ds_read_b128 %s, v%d' % (vr(S0 + 4 * b, 4), 8 + b))
    a('''
    s_waitcnt lgkmcnt(0)
    s_barrier
    s_mov_b32 exec_lo, 0
''')
    for b in range(4):
        s = S0 + 4 * b
        a('''
    v_max3_f32 v3, v%d, v%d, v%d
    v_max_f32 v3, v3, v%d
    v_mul_f32 v3, -1.0, v3
    v_cvt_pk_bf16_f32 v4, v3, v3
    v_lshlrev_b32 v5, 16, v4
    v_sub_f32 v3, v3, v5
    v_cvt_pk_bf16_f32 v5, v3, v3
    v_and_b32 v5, 0xffff0000, v5
    v_sub_f32 v3, v3, v5
    v_and_b32 v4, 0xffff, v4
    v_or_b32 v%d, v4, v5
    v_cvt_pk_bf16_f32 v%d, v3, 0
''' % (s, s + 1, s + 2, s + 3, Q0 + 8 * b + 6, Q0 + 8 * b + 7))
    a('''
    s_mov_b64 exec, -1
    s_branch k2_restart
''')
```

```python
from common import *

K3_GRID = 56
K3_BLOCK = 448
K3_LDS = 16384
M16 = 'v_mfma_f32_16x16x32_bf16'
L_P, L_AB, L_Y, L_F = 0, 4096, 4608, 8704
LOG2E = math.log2(math.e)


def k3(a):
    vm = VmTracker(a)
    st = Stamps(a, 3)
    KEY = 16
    GW = 24
    DW = 56
    GF = 72
    DFr = 104
    HB = 120
    GA = 128
    a('''
k3_kernel:
    s_cmp_ge_u32 s2, %d
    s_cbranch_scc1 k3_end
''' % K3_GRID)
    st.real('start_real')
    st('start')
    a('''
    s_load_dwordx4 s[8:11], s[0:1], 56
    s_load_dwordx4 s[12:15], s[0:1], 72
    s_load_dwordx2 s[16:17], s[0:1], 96
    v_and_b32 v1, 63, v0
    v_lshrrev_b32 v2, 6, v0
    v_readfirstlane_b32 s3, v2
    v_and_b32 v2, 15, v1
    v_lshrrev_b32 v3, 4, v1
    v_lshlrev_b32 v4, 5, v1
    v_add_u32 v4, %d, v4
    s_mov_b32 s20, 0x05040100
    s_mov_b32 s21, 0x07060302
    s_mul_i32 s18, s3, 229376
    s_lshl_b32 s19, s2, 6
    s_add_u32 s18, s18, s19
    v_mul_u32_u24 v5, 0x7000, v3
    v_lshl_add_u32 v5, v2, 2, v5
    v_add_u32 v5, s18, v5
    s_mov_b32 s26, 1605632
    s_mov_b32 s27, 0x00020000
    s_mov_b32 s30, 1605632
    s_mov_b32 s31, 0x00020000
''' % WS_KEY)
    for i in range(1, 16):
        ks2, j = i >> 3, i & 7
        a('s_mov_b32 s%d, %d' % (32 + i, (32 * ks2 + j) * 3584))
    a('''
    v_mul_u32_u24 v6, 0x1c00, v3
    v_lshl_add_u32 v6, v2, 3, v6
    s_lshl_b32 s18, s3, 7
    v_add_u32 v6, s18, v6
    v_add_u32 v7, 0xe00, v6
    s_mul_i32 s18, s2, 28672
    s_waitcnt lgkmcnt(0)
    s_mov_b32 s24, s8
    s_mov_b32 s25, s9
    s_mov_b32 s28, s10
    s_mov_b32 s29, s11
    s_add_u32 s22, s12, s18
    s_addc_u32 s23, s13, 0
''')
    vm.issue('global_load_dwordx4 %s, v4, s[16:17]' % vr(KEY, 4))
    lkey = vm.issue('global_load_dwordx4 %s, v4, s[16:17] offset:16' % vr(KEY + 4, 4))
    lg = {}
    for mat in range(2):
        for i in range(16):
            so = '0' if i == 0 else 's%d' % (32 + i)
            lg[(mat, i >> 3)] = vm.issue('buffer_load_dword v%d, v5, %s, %s offen' % (GW + 16 * mat + i, 's[24:27]' if mat == 0 else 's[28:31]', so))
    for j in range(8):
        ldn = vm.issue('global_load_dwordx2 %s, %s, s[22:23] offset:%d' % (vr(DW + 2 * j, 2), 'v6' if j < 4 else 'v7', (j & 3) * 896))
    st('issued')
    vm.wait(lkey)
    st('keys')
    a('''
    v_max_f32 v8, v%d, v%d
    v_min_f32 v9, v%d, v%d
''' % (KEY, KEY + 1, KEY, KEY + 1))
    for i in range(2, 8):
        a('v_med3_f32 v9, v8, v9, v%d' % (KEY + i))
        a('v_max_f32 v8, v8, v%d' % (KEY + i))
    for r in (1, 2, 4, 8):
        a('''
    v_mov_b32_dpp v10, v8 row_ror:%d row_mask:0xf bank_mask:0xf
    v_max_f32_dpp v9, v9, v9 row_ror:%d row_mask:0xf bank_mask:0xf
    v_med3_f32 v9, v8, v10, v9
    v_max_f32 v8, v8, v10
''' % (r, r))
    for op in ('v_permlane16_swap_b32', 'v_permlane32_swap_b32'):
        a('''
    v_mov_b32 v10, v8
    v_mov_b32 v11, v9
    %s v8, v10
    %s v9, v11
    v_max_f32 v9, v9, v11
    v_med3_f32 v9, v8, v10, v9
    v_max_f32 v8, v8, v10
''' % (op, op))
    st('top2')
    a('''
    v_and_b32 v10, 0x7ff, v8
    v_and_b32 v11, 0x7ff, v9
    v_and_b32 v12, 1, v1
    v_cmp_eq_u32 vcc, 1, v12
    v_cndmask_b32 v12, v10, v11, vcc
    v_mul_u32_u24 v12, 0x700, v12
    v_lshl_add_u32 v12, v3, 4, v12
    s_lshl_b32 s18, s3, 7
    s_add_u32 s18, s18, %d
    v_add_u32 v12, s18, v12
''' % (WS_CROW + 896))
    vm.issue('global_load_dwordx4 %s, v12, s[16:17]' % vr(HB, 4))
    lh = vm.issue('global_load_dwordx4 %s, v12, s[16:17] offset:64' % vr(HB + 4, 4))
    a('''
    v_mul_u32_u24 v13, 0x700, v10
    v_mul_u32_u24 v14, 0x700, v11
    v_lshl_add_u32 v13, v0, 1, v13
    v_lshl_add_u32 v14, v0, 1, v14
    v_add_u32 v13, %d, v13
    v_add_u32 v14, %d, v14
''' % (WS_CROW, WS_CROW))
    vm.issue('global_load_ushort v16, v13, s[16:17]')
    vm.issue('global_load_ushort v17, v13, s[16:17] offset:896')
    vm.issue('global_load_ushort v18, v14, s[16:17]')
    lfin = vm.issue('global_load_ushort v19, v14, s[16:17] offset:896')
    for mat in range(2):
        for ks2 in range(2):
            vm.wait(lg[(mat, ks2)])
            R = GW + 16 * mat + 8 * ks2
            for e in range(2):
                for p in range(4):
                    a('v_perm_b32 v%d, v%d, v%d, %s' % (GF + 16 * mat + 8 * ks2 + 4 * e + p, R + 2 * p + 1, R + 2 * p, 's21' if e else 's20'))
    vm.wait(ldn)
    st('weights')
    for e in range(4):
        for p in range(4):
            lo = DW + 2 * (2 * p) + (e >> 1)
            hi = DW + 2 * (2 * p + 1) + (e >> 1)
            a('v_perm_b32 v%d, v%d, v%d, %s' % (DFr + 4 * e + p, hi, lo, 's21' if e & 1 else 's20'))
    a('''
    s_lshl_b32 s18, s3, 8
    v_lshl_add_u32 v12, v2, 7, s18
    v_lshl_add_u32 v12, v3, 4, v12
    v_lshlrev_b32 v15, 2, v1
''')
    vm.wait(lh)
    st('hn')
    for ks2 in range(2):
        for mat in range(2):
            for e in range(2):
                d = vr(GA + 8 * mat + 4 * e, 4)
                a('%s %s, %s, %s, %s' % (M16, d, vr(GF + 16 * mat + 8 * ks2 + 4 * e, 4), vr(HB + 4 * ks2, 4), '0' if ks2 == 0 else d))
    a('''
    s_mov_b32 exec_lo, 0x00030003
    s_mov_b32 exec_hi, 0x00030003
''')
    for mat in range(2):
        for e in range(2):
            a('ds_write_b128 v12, %s offset:%d' % (vr(GA + 8 * mat + 4 * e, 4), L_P + 1792 * mat + 64 * e))
    a('''
    s_mov_b64 exec, -1
    s_waitcnt lgkmcnt(0)
    s_barrier
    s_cmp_eq_u32 s3, 0
    s_cbranch_scc0 k3_skip
''')
    for mat in range(2):
        for kw in range(7):
            a('ds_read_b32 v%d, v15 offset:%d' % (GW + 8 * mat + kw, L_P + 1792 * mat + 256 * kw))
    a('''
    v_and_b32 v20, 15, v1
    v_bfe_u32 v21, v1, 4, 1
    v_lshl_add_u32 v20, v20, 1, v21
    v_lshrrev_b32 v21, 5, v1
    v_lshl_add_u32 v20, v21, 5, v20
    v_lshlrev_b32 v20, 1, v20
    s_waitcnt lgkmcnt(0)
''')
    for mat in range(2):
        g = GW + 8 * mat
        a('''
    v_add_f32 v%d, v%d, v%d
    v_add_f32 v%d, v%d, v%d
    v_add_f32 v%d, v%d, v%d
    v_add_f32 v%d, v%d, v%d
    v_add_f32 v%d, v%d, v%d
    v_add_f32 v%d, v%d, v%d
''' % (g, g, g + 1, g + 2, g + 2, g + 3, g + 4, g + 4, g + 5, g, g, g + 6, g + 2, g + 2, g + 4, g, g, g + 2))
    a('''
    v_cvt_pk_bf16_f32 v21, v%d, v%d
    v_lshlrev_b32 v22, 16, v21
    v_and_b32 v23, 0xffff0000, v21
    v_mul_f32 v21, %s, v22
    v_exp_f32 v21, v21
    v_add_f32 v21, 1.0, v21
    v_rcp_f32 v21, v21
    v_mul_f32 v21, v21, v22
    v_cvt_pk_bf16_f32 v21, v21, v21
    v_lshlrev_b32 v21, 16, v21
    v_mul_f32 v21, v21, v23
    v_cvt_pk_bf16_f32 v21, v21, v21
    ds_write_b16 v20, v21 offset:%d
    s_waitcnt lgkmcnt(0)
k3_skip:
    v_and_b32 v20, 1, v1
    v_lshlrev_b32 v20, 6, v20
    v_lshl_add_u32 v20, v3, 4, v20
    s_barrier
    ds_read_b128 %s, v20 offset:%d
''' % (GW, GW + 8, f32bits(-LOG2E), L_AB, vr(HB, 4), L_AB))
    st('act')
    a('''
    s_lshl_b32 s18, s3, 9
    v_lshl_add_u32 v12, v2, 8, s18
    v_lshl_add_u32 v12, v3, 4, v12
    v_and_b32 v20, 3, v1
    v_lshl_add_u32 v20, v20, 6, s18
    v_lshrrev_b32 v21, 2, v1
    v_lshl_add_u32 v20, v21, 2, v20
    v_lshlrev_b32 v21, 2, v0
    v_add_u32 v21, %d, v21
    s_waitcnt lgkmcnt(0)
''' % WS_YACC)
    for e in range(4):
        a('%s %s, %s, %s, 0' % (M16, vr(GA + 4 * e, 4), vr(DFr + 4 * e, 4), vr(HB, 4)))
    a('''
    s_mov_b32 exec_lo, 0x00030003
    s_mov_b32 exec_hi, 0x00030003
''')
    for e in range(4):
        a('ds_write_b128 v12, %s offset:%d' % (vr(GA + 4 * e, 4), L_Y + 64 * e))
    a('''
    s_mov_b64 exec, -1
    s_waitcnt lgkmcnt(0)
    ds_read_b32 v22, v20 offset:%d
    ds_read_b32 v23, v20 offset:%d
    s_waitcnt lgkmcnt(0)
    global_atomic_add_f32 v21, v22, s[16:17] sc1
    global_atomic_add_f32 v21, v23, s[16:17] offset:1792 sc1
    s_waitcnt vmcnt(0)
''' % (L_Y, L_Y + 256))
    st('atomics')
    a('''
    s_barrier
    v_mov_b32 v24, 0
    s_cmp_eq_u32 s3, 0
    s_cbranch_scc0 k3_skip2
    s_mov_b64 exec, 1
    v_mov_b32 v22, %d
    v_mov_b32 v23, 1
    global_atomic_add v25, v22, v23, s[16:17] sc0 sc1
    s_waitcnt vmcnt(0)
    ds_write_b32 v24, v25 offset:%d
    s_waitcnt lgkmcnt(0)
    s_mov_b64 exec, -1
k3_skip2:
    s_barrier
    ds_read_b32 v25, v24 offset:%d
    s_waitcnt lgkmcnt(0)
    v_readfirstlane_b32 s18, v25
    s_cmp_eq_u32 s18, %d
    s_cbranch_scc0 k3_fin
    global_load_dword v22, v21, s[16:17] sc1
    global_load_dword v23, v21, s[16:17] offset:1792 sc1
''' % (WS_YACC + 3584, L_F, L_F, K3_GRID - 1))
    a('''
    v_cvt_pk_bf16_f32 v24, v8, v9
    v_lshlrev_b32 v25, 16, v24
    v_and_b32 v26, 0xffff0000, v24
    v_mul_f32 v25, %s, v25
    v_mul_f32 v26, %s, v26
    v_exp_f32 v25, v25
    v_exp_f32 v26, v26
    v_add_f32 v25, 1.0, v25
    v_add_f32 v26, 1.0, v26
    v_rcp_f32 v25, v25
    v_rcp_f32 v26, v26
    v_cvt_pk_bf16_f32 v24, v25, v26
    v_lshlrev_b32 v25, 16, v24
    v_and_b32 v26, 0xffff0000, v24
    v_lshlrev_b32 v16, 16, v16
    v_lshlrev_b32 v17, 16, v17
    v_lshlrev_b32 v18, 16, v18
    v_lshlrev_b32 v19, 16, v19
    v_mul_u32_u24 v13, 0x380, v10
    v_mul_u32_u24 v14, 0x380, v11
    v_lshl_add_u32 v13, v0, 1, v13
    v_lshl_add_u32 v14, v0, 1, v14
    s_waitcnt vmcnt(0)
    v_cvt_pk_bf16_f32 v24, v22, v23
    v_lshlrev_b32 v22, 16, v24
    v_and_b32 v23, 0xffff0000, v24
    v_mul_f32 v22, v22, v25
    v_mul_f32 v23, v23, v26
    v_cvt_pk_bf16_f32 v24, v22, v23
    v_lshlrev_b32 v22, 16, v24
    v_and_b32 v23, 0xffff0000, v24
    v_add_f32 v22, v22, v17
    v_add_f32 v23, v23, v19
    v_cvt_pk_bf16_f32 v24, v22, v23
    v_lshlrev_b32 v22, 16, v24
    v_and_b32 v23, 0xffff0000, v24
    v_add_f32 v22, v22, v16
    v_add_f32 v23, v23, v18
    v_cvt_pk_bf16_f32 v24, v22, v23
    global_store_short v13, v24, s[14:15]
    global_store_short_d16_hi v14, v24, s[14:15]
k3_fin:
''' % (f32bits(-LOG2E), f32bits(-LOG2E)))
    st.flush('s[16:17]', 's3')
    a('''
k3_end:
    s_endpgm
''')
```

```python
import re, sys
src = sys.argv[1]; dst = sys.argv[2]
s=open(src).read()
parts = re.split(r'(?m)^(k[123])_kernel:\n', s)
out = parts[0]
for i in range(1, len(parts), 2):
    k = parts[i]; body = parts[i+1]; idx = int(k[1])-1
    va, vb = {'k1':(250,251),'k2':(14,15),'k3':(142,143)}[k]
    ent = '''%s_kernel:
    s_memrealtime s[90:91]
    s_load_dwordx2 s[92:93], s[0:1], 88
    s_and_b32 s94, s2, 7
    v_or_b32 v%d, s94, v0
    v_cmp_eq_u32 vcc, 0, v%d
    s_waitcnt lgkmcnt(0)
    s_add_u32 s92, s92, %d
    s_addc_u32 s93, s93, 0
    s_not_b32 s91, s90
    v_mov_b32 v%d, s91
    v_mov_b32 v%d, %d
    s_mov_b64 s[94:95], exec
    s_mov_b64 exec, vcc
    global_atomic_umax v%d, v%d, s[92:93] sc1
    v_mov_b32 v%d, s90
    s_nop 1
    global_atomic_umax v%d, v%d, s[92:93] offset:4 sc1
    s_mov_b64 exec, s[94:95]
''' % (k, va, va, 512*(2-idx), va, vb, 16*idx, vb, va, va, vb, va)
    end = '''    s_mov_b64 exec, -1
    s_waitcnt vmcnt(0) lgkmcnt(0)
    s_memrealtime s[90:91]
    s_load_dwordx2 s[92:93], s[0:1], 88
    s_getreg_b32 s94, hwreg(HW_REG_HW_ID, 0, 6)
    s_waitcnt lgkmcnt(0)
    s_add_u32 s92, s92, %d
    s_addc_u32 s93, s93, 0
    v_mov_b32 v0, s90
    v_mov_b32 v1, %d
    s_not_b32 s91, s90
    v_mov_b32 v2, s91
    s_and_b32 s94, s2, 3
    s_cmp_eq_u32 s94, 0
    s_cselect_b64 exec, 1, 0
    s_cmp_eq_u32 %d, 2
    s_cselect_b64 exec, 1, exec
    s_nop 4
    global_atomic_umax v1, v0, s[92:93] offset:12 sc1
    global_atomic_umax v1, v2, s[92:93] offset:8 sc1
    s_endpgm
''' % (512*(2-idx), 16*idx, idx)
    body = body.replace('    s_endpgm\n', end)
    out += ent + body
open(dst,'w').write(out)
```

```python
import math

WS_Q = 0x000000
WS_KV = 0x200000
WS_VB = 0x240000
WS_KMAX = 0x260000
WS_WOF = 0x270000
WS_KEY = 0x2E0000
WS_YACC = 0x2E1000
WS_CROW = 0x400000

QSCALE = math.log2(math.e) / math.sqrt(28.0) * 1024.0 / 65535.0


def f32bits(x):
    import struct
    return '0x%08x' % struct.unpack('<I', struct.pack('<f', x))[0]


def vr(base, n=1):
    return 'v%d' % base if n == 1 else 'v[%d:%d]' % (base, base + n - 1)


def ar(base, n=1):
    return 'a%d' % base if n == 1 else 'a[%d:%d]' % (base, base + n - 1)


def sr(base, n=1):
    return 's%d' % base if n == 1 else 's[%d:%d]' % (base, base + n - 1)


class VmTracker:
    def __init__(self, a):
        self.a = a
        self.n = 0
        self.done = 0

    def issue(self, text):
        self.a(text)
        self.n += 1
        return self.n - 1

    def wait(self, idx):
        if idx < self.done:
            return
        cnt = self.n - 1 - idx
        assert cnt >= 0
        if cnt > 63:
            cnt = 63
            raise AssertionError('vmcnt overflow')
        self.a('s_waitcnt vmcnt(%d)' % cnt)
        self.done = idx + 1

    def wait_all(self):
        self.a('s_waitcnt vmcnt(0)')
        self.done = self.n


def allreduce16(a, op, v, tmp=None):
    for r in (8, 4, 2, 1):
        a('%s_dpp %s, %s, %s row_ror:%d row_mask:0xf bank_mask:0xf' % (op, v, v, v, r))


def xreduce16(a, op, v, tmp):
    a('v_mov_b32 %s, %s' % (tmp, v))
    a('v_permlane16_swap_b32 %s, %s' % (v, tmp))
    a('%s %s, %s, %s' % (op, v, v, tmp))


def xreduce32(a, op, v, tmp):
    a('v_mov_b32 %s, %s' % (tmp, v))
    a('v_permlane32_swap_b32 %s, %s' % (v, tmp))
    a('%s %s, %s, %s' % (op, v, v, tmp))


def kdesc(name, nvgpr, accum, nsgpr=102):
    return '''.p2align 6
.amdhsa_kernel %s
  .amdhsa_next_free_vgpr %d
  .amdhsa_next_free_sgpr %d
  .amdhsa_accum_offset %d
  .amdhsa_group_segment_fixed_size 0
  .amdhsa_kernarg_size 104
  .amdhsa_user_sgpr_count 2
  .amdhsa_user_sgpr_kernarg_segment_ptr 1
  .amdhsa_system_sgpr_workgroup_id_x 1
.end_amdhsa_kernel
''' % (name, nvgpr, nsgpr, accum)


import os
DEBUG = int(os.environ.get('KDBG', '0'))
WS_DBG = 0x800000


class Stamps:
    def __init__(self, a, kidx, base=60):
        self.a, self.kidx, self.base, self.n = a, kidx, base, 0
        self.names = []

    def real(self, name):
        if not DEBUG:
            return
        self.a('s_memrealtime s[98:99]\ns_waitcnt lgkmcnt(0)\ns_mov_b32 s%d, s98' % (self.base + self.n))
        self.names.append(name)
        self.n += 1

    def __call__(self, name):
        if not DEBUG:
            return
        self.a('s_memtime s[98:99]\ns_waitcnt lgkmcnt(0)\ns_mov_b32 s%d, s98' % (self.base + self.n))
        self.names.append(name)
        self.n += 1

    def flush(self, ws, wave, v0='v0', v1='v1'):
        if not DEBUG:
            return
        a = self.a
        a('s_mov_b64 exec, -1')
        a('s_waitcnt vmcnt(0)')
        a('s_memtime s[98:99]\ns_waitcnt lgkmcnt(0)\ns_mov_b32 s%d, s98' % (self.base + self.n))
        a('s_memrealtime s[98:99]\ns_waitcnt lgkmcnt(0)\ns_mov_b32 s%d, s98' % (self.base + self.n + 1))
        a('s_getreg_b32 s%d, hwreg(HW_REG_XCC_ID)' % (self.base + self.n + 2))
        for i in range(self.n + 3):
            a('v_writelane_b32 %s, s%d, %d' % (v1, self.base + i, i))
        a('''
    s_lshl_b32 s98, s2, 3
    s_add_u32 s98, s98, %s
    s_lshl_b32 s98, s98, 7
    s_add_u32 s98, s98, %d
    v_mbcnt_lo_u32_b32 %s, -1, 0
    v_lshlrev_b32 %s, 2, %s
    v_add_u32 %s, s98, %s
    s_mov_b32 exec_hi, 0
    global_store_dword %s, %s, %s
''' % (wave, WS_DBG + self.kidx * 0x80000, v0, v0, v0, v0, v0, v0, v1, ws))
        open('stamps_k%d.txt' % self.kidx, 'w').write('\n'.join(self.names + ['end', 'end_real', 'xcc']) + '\n')
```

```python
from common import *

K1_GRID = 281
K1_LDS = 51200
X0, W0, ACC0, F0 = 20, 48, 160, 224
L_SUM, L_SQ = 49152, 50176


def k1(a):
    for cq in range(112):
        assert (cq * 147) >> 10 == cq // 7
    vm = VmTracker(a)
    st = Stamps(a, 1)
    a('''
k1_kernel:
    s_cmp_ge_u32 s2, %d
    s_cbranch_scc1 k1_end
''' % K1_GRID)
    st.real('start_real')
    st('start')
    a('''
    s_load_dwordx4 s[4:7], s[0:1], 0
    s_load_dwordx4 s[8:11], s[0:1], 16
    s_load_dwordx2 s[12:13], s[0:1], 32
    s_load_dwordx2 s[14:15], s[0:1], 96
    v_and_b32 v1, 63, v0
    v_lshrrev_b32 v5, 6, v0
    v_readfirstlane_b32 s18, v5
    s_mov_b32 s20, 0x05040100
    s_mov_b32 s21, 0x07060302
    s_mov_b32 s22, 0x3f803f80
    s_mov_b32 s23, 0xffff0000
    s_movk_i32 s30, 896
    s_cmp_ge_u32 s2, 256
    s_cbranch_scc1 k1_wo
    s_and_b32 s16, s2, 7
    s_lshr_b32 s19, s2, 5
    s_lshl_b32 s19, s19, 3
    s_add_u32 s16, s16, s19
    s_bfe_u32 s17, s2, 0x20003
    v_and_b32 v2, 31, v1
    v_lshrrev_b32 v3, 5, v1
    s_mul_i32 s19, s18, 224
    v_mul_u32_u24 v5, 0x380, v2
    v_lshl_add_u32 v5, v3, 4, v5
    v_add_u32 v5, s19, v5
    s_mul_i32 s19, s16, 28672
    s_waitcnt lgkmcnt(0)
    s_add_u32 s24, s4, s19
    s_addc_u32 s25, s5, 0
''')
    st('kernarg')
    xl = []
    for ks in range(7):
        xl.append(vm.issue('global_load_dwordx4 %s, v5, s[24:25] offset:%d' % (vr(X0 + 4 * ks, 4), 32 * ks)))
    a('''
    s_lshl_b32 s19, s18, 3
    v_add_u32 v4, s19, v2
    v_and_b32 v4, 31, v4
    s_mul_i32 s19, s18, 112
    v_lshl_add_u32 v12, v3, 3, s19
    s_lshl_b32 s19, s17, 8
    v_lshl_add_u32 v13, v4, 3, s19
    v_mad_u32_u24 v13, v12, s30, v13
    v_and_b32 v14, 7, v4
    v_min_u32 v14, 6, v14
    v_lshlrev_b32 v14, 3, v14
    v_mad_u32_u24 v14, v12, 56, v14
    s_cmp_eq_u32 s17, 3
    s_cselect_b32 s19, 16, 32
    v_cmp_le_u32 vcc, s19, v4
    v_cmp_le_u32 s[26:27], 24, v4
    v_mov_b32 v6, s8
    v_mov_b32 v15, s10
    v_mov_b32 v7, s9
    v_mov_b32 v16, s11
    v_cndmask_b32 v6, v6, v15, s[26:27]
    v_cndmask_b32 v7, v7, v16, s[26:27]
    v_mov_b32 v15, s6
    v_mov_b32 v16, s7
    v_cndmask_b32 v6, v15, v6, vcc
    v_cndmask_b32 v7, v16, v7, vcc
    v_cndmask_b32 v13, v13, v14, vcc
    v_mov_b32 v8, s30
    v_cndmask_b32 v8, v8, 56, vcc
    v_mov_b32 v9, 0
    v_mul_u32_u24 v10, 9, v8
    v_mov_b32 v11, 0
    v_add_co_u32 v6, vcc, v6, v13
    v_addc_co_u32 v7, vcc, 0, v7, vcc
''')
    wl = []
    for ks in range(7):
        for j in range(8):
            i = vm.issue('global_load_dwordx2 %s, v[6:7], off' % vr(W0 + 16 * ks + 2 * j, 2))
            if not (ks == 6 and j == 7):
                a('v_lshl_add_u64 v[6:7], %s, 0, v[6:7]' % ('v[10:11]' if j == 7 else 'v[8:9]'))
        wl.append(i)
    a('''
    s_lshl_b32 s19, s16, 15
    v_lshrrev_b32 v6, 3, v2
    v_lshl_add_u32 v6, v6, 13, s19
    v_and_b32 v7, 7, v2
    v_lshl_add_u32 v6, v7, 4, v6
    s_lshl_b32 s19, s17, 5
    s_lshl_b32 s26, s18, 3
    s_add_u32 s19, s19, s26
    v_lshl_add_u32 v7, v3, 2, s19
    s_movk_i32 s26, 147
''')
    for i in range(4):
        a('''
    v_add_u32 v8, %d, v7
    v_mul_u32_u24 v9, s26, v8
    v_lshrrev_b32 v9, 10, v9
    v_mad_i32_i24 v8, v9, -7, v8
    v_lshrrev_b32 v10, 2, v9
    v_lshl_add_u32 v%d, v10, 11, v6
    v_and_b32 v10, 3, v9
    v_lshl_add_u32 v%d, v10, 7, v%d
    v_lshrrev_b32 v10, 1, v8
    v_lshl_add_u32 v%d, v10, 9, v%d
    v_and_b32 v10, 1, v8
    v_lshl_add_u32 v%d, v10, 3, v%d
''' % (i, 12 + i, 12 + i, 12 + i, 12 + i, 12 + i, 12 + i, 12 + i))
    for g in (1, 2, 3):
        a('''
    s_add_u32 s19, s18, %d
    s_and_b32 s19, s19, 3
    s_mul_i32 s19, s19, 3
    s_add_u32 s19, s19, %d
    s_lshl_b32 s19, s19, 12
    v_lshl_add_u32 v%d, v1, 4, s19
''' % (g, g - 1, 15 + g))
    a('''
    s_mul_i32 s19, s18, 12288
    v_lshl_add_u32 v19, v1, 4, s19
    v_lshlrev_b32 v5, 5, v2
    s_lshl_b32 s19, s18, 3
    v_lshl_add_u32 v4, v3, 2, s19
    v_add_u32 v4, v4, v5
    v_mov_b32 v6, 0
    v_mov_b32 v7, 0
''')
    st('issued')
    vm.wait(xl[-1])
    st('x_arrived')
    for r in range(28):
        a('v_dot2c_f32_bf16 v%d, s22, v%d' % (6 + (r & 1), X0 + r))
    T = F0
    a('''
    v_add_f32 v6, v6, v7
    ds_write_b32 v4, v6 offset:%d
    s_waitcnt lgkmcnt(0)
    s_barrier
    ds_read_b128 %s, v5 offset:%d
    ds_read_b128 %s, v5 offset:%d
    v_mov_b32 v10, 0
    v_mov_b32 v11, 0
    s_waitcnt lgkmcnt(0)
    v_pk_add_f32 %s, %s, %s
    v_pk_add_f32 %s, %s, %s
    v_pk_add_f32 %s, %s, %s
    v_add_f32 v6, v%d, v%d
    v_mul_f32 v6, %s, v6
    v_cvt_pk_bf16_f32 v8, v6, v6
    v_lshlrev_b32 v8, 16, v8
    v_sub_f32 v6, v6, v8
''' % (L_SUM, vr(T, 4), L_SUM, vr(T + 4, 4), L_SUM + 16,
       vr(T, 2), vr(T, 2), vr(T + 2, 2),
       vr(T + 4, 2), vr(T + 4, 2), vr(T + 6, 2),
       vr(T, 2), vr(T, 2), vr(T + 4, 2),
       T, T + 1, f32bits(1.0 / 448)))
    st('mean')
    for ks in range(7):
        fs = F0 + 16 * (ks & 1)
        for r in range(4):
            R = X0 + 4 * ks + r
            tp = fs + 2 * r
            a('''
    v_lshlrev_b32 v%d, 16, v%d
    v_and_b32 v%d, s23, v%d
    v_pk_add_f32 %s, %s, v[8:9] op_sel_hi:[1,0] neg_lo:[0,1] neg_hi:[0,1]
    v_pk_fma_f32 v[10:11], %s, %s, v[10:11]
    v_cvt_pk_bf16_f32 v%d, v%d, v%d
''' % (tp, R, tp + 1, R, vr(tp, 2), vr(tp, 2), vr(tp, 2), vr(tp, 2), R, tp, tp + 1))
        vm.wait(wl[ks])
        if ks in (0, 6):
            st('w%d' % ks)
        for e in range(4):
            for p in range(4):
                lo = W0 + 16 * ks + 2 * (2 * p) + (e >> 1)
                hi = W0 + 16 * ks + 2 * (2 * p + 1) + (e >> 1)
                a('v_perm_b32 v%d, v%d, v%d, %s' % (fs + 4 * e + p, hi, lo, 's21' if e & 1 else 's20'))
        for e in range(4):
            acc = vr(ACC0 + 16 * e, 16)
            a('v_mfma_f32_32x32x16_bf16 %s, %s, %s, %s' % (acc, vr(fs + 4 * e, 4), vr(X0 + 4 * ks, 4), '0' if ks == 0 else acc))
    st('mfma_issued')
    a('''
    v_add_f32 v10, v10, v11
    ds_write_b32 v4, v10 offset:%d
''' % L_SQ)
    for e in range(4):
        for g in (1, 2, 3):
            a('ds_write_b128 v%d, %s offset:%d' % (15 + g, vr(ACC0 + 16 * e + 4 * g, 4), e * 1024))
    a('''
    s_waitcnt lgkmcnt(0)
    s_barrier
    ds_read_b128 %s, v5 offset:%d
    ds_read_b128 %s, v5 offset:%d
''' % (vr(T, 4), L_SQ, vr(T + 4, 4), L_SQ + 16))
    for src in range(3):
        for e in range(4):
            a('ds_read_b128 %s, v19 offset:%d' % (vr(W0 + 16 * src + 4 * e, 4), (src * 4 + e) * 1024))
    a('''
    s_waitcnt lgkmcnt(12)
    v_pk_add_f32 %s, %s, %s
    v_pk_add_f32 %s, %s, %s
    v_pk_add_f32 %s, %s, %s
    v_add_f32 v7, v%d, v%d
    v_mul_f32 v7, %s, v7
    v_fma_f32 v7, -v6, v6, v7
    v_cvt_pk_bf16_f32 v7, v7, v7
    v_lshlrev_b32 v7, 16, v7
    v_add_f32 v7, %s, v7
    v_cvt_pk_bf16_f32 v7, v7, v7
    v_lshlrev_b32 v7, 16, v7
    v_sqrt_f32 v7, v7
    v_cvt_pk_bf16_f32 v7, v7, v7
    v_lshlrev_b32 v7, 16, v7
    v_rcp_f32 v8, v7
''' % (vr(T, 2), vr(T, 2), vr(T + 2, 2),
       vr(T + 4, 2), vr(T + 4, 2), vr(T + 6, 2),
       vr(T, 2), vr(T, 2), vr(T + 4, 2),
       T, T + 1, f32bits(1.0 / 448), f32bits(1e-5)))
    st('xchg')
    a('''
    s_lshl_b32 s19, s17, 2
    s_add_u32 s19, s19, s18
    s_max_u32 s26, s19, 13
    s_sub_u32 s26, s26, 13
    s_cmp_eq_u32 s26, 0
    s_cselect_b32 s27, %s, 1.0
    v_mul_f32 v8, s27, v8
    s_lshl_b32 s27, s16, 3
    s_add_u32 s27, s27, %d
    s_mov_b32 s28, 0
    s_mov_b32 s29, -1
''' % (f32bits(QSCALE), WS_KMAX))
    for src in range(3):
        a('s_waitcnt lgkmcnt(%d)' % (8 - 4 * src))
        for e in range(4):
            for p in range(2):
                d = vr(ACC0 + 16 * e + 2 * p, 2)
                a('v_pk_add_f32 %s, %s, %s' % (d, d, vr(W0 + 16 * src + 4 * e + 2 * p, 2)))
    for e in range(4):
        for p in range(2):
            d = vr(ACC0 + 16 * e + 2 * p, 2)
            a('v_pk_mul_f32 %s, %s, v[8:9] op_sel_hi:[1,0]' % (d, d))
    N = F0
    for e in range(4):
        for p in range(2):
            d = vr(ACC0 + 16 * e + 2 * p, 2)
            n = vr(N + 2 * p, 2)
            if e == 0:
                a('v_pk_mul_f32 %s, %s, %s' % (n, d, d))
            else:
                a('v_pk_fma_f32 %s, %s, %s, %s' % (n, d, d, n))
    D = F0 + 8
    A = lambda e, i: ACC0 + 16 * e + i
    a('''
    s_cmp_eq_u32 s26, 2
    s_cbranch_scc1 k1_v
''')
    for i in range(4):
        a('v_cvt_pk_bf16_f32 v%d, v%d, v%d' % (D + 2 * i, A(0, i), A(1, i)))
        a('v_cvt_pk_bf16_f32 v%d, v%d, v%d' % (D + 2 * i + 1, A(2, i), A(3, i)))
    a('''
    s_cmp_eq_u32 s26, 1
    s_cbranch_scc1 k1_k
''')
    for i in range(4):
        a('global_store_dwordx2 v%d, %s, s[14:15]' % (12 + i, vr(D + 2 * i, 2)))
    st('stored')
    st.flush('s[14:15]', 's18')
    a('s_endpgm')
    a('''
k1_k:
    v_mov_b32 v6, s22
    v_mov_b32 v7, 0x3f80
    v_cndmask_b32 v%d, v%d, v6, s[28:29]
    v_cndmask_b32 v%d, v%d, v7, s[28:29]
    v_cndmask_b32 v%d, v%d, 0, s[28:29]
    s_lshl_b32 s19, s16, 12
    s_add_u32 s19, s19, %d
    v_lshl_add_u32 v12, v2, 4, s19
    v_lshl_add_u32 v12, v3, 10, v12
''' % (D + 6, D + 6, D + 7, D + 7, N + 3, N + 3, WS_KV))
    for i in range(4):
        a('global_store_dwordx2 v12, %s, s[14:15] offset:%d' % (vr(D + 2 * i, 2), (i >> 1) * 512 + (i & 1) * 8))
    a('''
    v_add_f32 v6, v%d, v%d
    v_add_f32 v7, v%d, v%d
    v_add_f32 v6, v6, v7
''' % (N, N + 1, N + 2, N + 3))
    xreduce32(a, 'v_add_f32', 'v6', 'v7')
    allreduce16(a, 'v_max_f32', 'v6')
    xreduce16(a, 'v_max_f32', 'v6', 'v7')
    a('''
    v_mov_b32 v7, s27
    s_mov_b64 exec, 1
    global_store_dword v7, v6, s[14:15]
    s_endpgm
''')
    a('''
k1_v:
    v_cndmask_b32 v%d, v%d, 1.0, s[28:29]
    v_cndmask_b32 v%d, v%d, 0, s[28:29]
    v_cndmask_b32 v%d, v%d, 0, s[28:29]
    v_cndmask_b32 v%d, v%d, 0, s[28:29]
    s_lshl_b32 s19, s16, 12
    s_add_u32 s19, s19, %d
    v_lshrrev_b32 v6, 4, v2
    v_lshl_add_u32 v12, v6, 10, s19
    v_bfe_u32 v6, v2, 2, 1
    v_lshl_add_u32 v12, v6, 9, v12
    v_lshl_add_u32 v12, v3, 8, v12
    v_bfe_u32 v6, v2, 3, 1
    v_lshl_add_u32 v12, v6, 3, v12
    v_and_b32 v6, 3, v2
    v_lshl_add_u32 v12, v6, 1, v12
    s_lshl_b32 s19, s16, 11
    s_sub_u32 s19, %d, s19
    v_add_u32 v13, s19, v12
''' % (A(0, 3), A(0, 3), A(1, 3), A(1, 3), A(2, 3), A(2, 3), A(3, 3), A(3, 3), WS_KV + 2048, WS_VB - WS_KV - 2048))
    for i in range(4):
        a('v_cvt_pk_bf16_f32 v%d, v%d, v%d' % (D + 2 * i, A(0, i), A(1, i)))
        a('v_cvt_pk_bf16_f32 v%d, v%d, v%d' % (D + 2 * i + 1, A(2, i), A(3, i)))
    for i in range(4):
        for e in range(4):
            op = 'global_store_short_d16_hi' if e & 1 else 'global_store_short'
            a('%s v13, v%d, s[14:15] offset:%d' % (op, D + 2 * i + (e >> 1), 64 * i + 16 * e))
    for i in range(4):
        a('v_cvt_pk_f16_f32 v%d, v%d, v%d' % (D + 8 + 2 * i, A(0, i), A(1, i)))
        a('v_cvt_pk_f16_f32 v%d, v%d, v%d' % (D + 8 + 2 * i + 1, A(2, i), A(3, i)))
    for i in range(4):
        for e in range(4):
            op = 'global_store_short_d16_hi' if e & 1 else 'global_store_short'
            a('%s v12, v%d, s[14:15] offset:%d' % (op, D + 8 + 2 * i + (e >> 1), 64 * i + 16 * e))
    a('''
    v_max3_f32 v6, v%d, v%d, v%d
    v_max_f32 v6, v6, v%d
''' % (N, N + 1, N + 2, N + 3))
    allreduce16(a, 'v_max_f32', 'v6')
    xreduce16(a, 'v_max_f32', 'v6', 'v7')
    xreduce32(a, 'v_max_f32', 'v6', 'v7')
    a('''
    v_mov_b32 v7, s27
    s_mov_b64 exec, 1
    global_store_dword v7, v6, s[14:15] offset:4
    s_endpgm
''')
    a('''
k1_wo:
    s_sub_u32 s16, s2, 256
    s_lshl_b32 s16, s16, 2
    s_add_u32 s16, s16, s18
    s_cmp_ge_u32 s16, 98
    s_cbranch_scc1 k1_zero
    s_mul_i32 s17, s16, 147
    s_lshr_b32 s17, s17, 10
    s_mul_i32 s19, s17, 7
    s_sub_u32 s16, s16, s19
    v_and_b32 v2, 15, v1
    v_lshrrev_b32 v3, 4, v1
    v_mul_u32_u24 v4, 0x1c00, v3
    v_lshl_add_u32 v4, v2, 3, v4
    v_add_u32 v5, 0xe00, v4
    s_mul_i32 s19, s17, 28672
    s_lshl_b32 s26, s16, 7
    s_add_u32 s19, s19, s26
    s_waitcnt lgkmcnt(0)
    s_add_u32 s24, s12, s19
    s_addc_u32 s25, s13, 0
''')
    for j in range(8):
        a('global_load_dwordx2 %s, %s, s[24:25] offset:%d' % (vr(W0 + 2 * j, 2), 'v4' if j < 4 else 'v5', (j & 3) * 896))
    a('''
    s_lshl_b32 s19, s17, 10
    s_add_u32 s19, s19, %d
    s_lshl_b32 s26, s16, 2
    v_lshrrev_b32 v6, 2, v2
    v_add_u32 v6, s26, v6
    v_mul_u32_u24 v6, 0x3800, v6
    v_add_u32 v6, s19, v6
    v_and_b32 v7, 3, v2
    v_lshl_add_u32 v6, v7, 6, v6
    v_lshl_add_u32 v6, v3, 8, v6
    s_waitcnt vmcnt(0)
''' % WS_WOF)
    for e in range(4):
        for p in range(4):
            lo = W0 + 2 * (2 * p) + (e >> 1)
            hi = W0 + 2 * (2 * p + 1) + (e >> 1)
            a('v_perm_b32 v%d, v%d, v%d, %s' % (F0 + 4 * e + p, hi, lo, 's21' if e & 1 else 's20'))
    for e in range(4):
        a('global_store_dwordx4 v6, %s, s[14:15] offset:%d' % (vr(F0 + 4 * e, 4), 16 * e))
    a('''
    s_endpgm
k1_zero:
    s_cmp_eq_u32 s16, 98
    s_cbranch_scc0 k1_end
    v_mov_b32 v4, 0
    v_mov_b32 v5, 0
    v_mov_b32 v6, 0
    v_mov_b32 v7, 0
    v_lshlrev_b32 v2, 4, v1
    v_add_u32 v2, %d, v2
    s_waitcnt lgkmcnt(0)
''' % WS_YACC)
    for i in range(4):
        a('global_store_dwordx4 v2, v[4:7], s[14:15] offset:%d' % (1024 * i))
    a('''
k1_end:
    s_endpgm
''')
```

```python
from common import *

K2_GRID = 256
K2_LDS = 65536
O0, Q0, S0, P0, T0, KB0, VB0, FR0 = 16, 80, 112, 144, 152, 156, 180, 204
NFR = 13
L_O, L_ST, L_FL, L_MX = 49152, 57600, 58368, 58624
OSTR = 912
M32 = 'v_mfma_f32_32x32x16_bf16'
M32H = 'v_mfma_f32_32x32x16_f16'
M16 = 'v_mfma_f32_16x16x32_bf16'
EXPMODE = os.environ.get('EXPMODE', 'quad')

WO_START = int(os.environ.get('WO_START', '4'))
WO_END = int(os.environ.get('WO_END', '58'))
NIN = 64 + NFR


def frag_reg(f):
    if f < 64:
        return ar(4 * f, 4)
    if f < NIN:
        return vr(FR0 + 4 * (f - 64), 4)
    g = f - NIN
    if g < 8:
        return vr(S0 + 4 * g, 4)
    return vr(T0 + 4 * (g - 8), 4)


def k2(a):
    vm = VmTracker(a)
    st = Stamps(a, 2)
    Ob = lambda b: vr(O0 + 16 * b, 16)
    Qf = lambda b, s: vr(Q0 + 8 * b + 4 * s, 4)
    Sb = lambda n: S0 + 16 * (n & 1)
    Kf = lambda t, s: vr(KB0 + 8 * (t % 3) + 4 * s, 4)
    Vf = lambda t, u: vr(VB0 + 8 * (t % 3) + 4 * u, 4)
    soff = lambda t: 's%d' % (11 + t % 3)

    def tile_off(t):
        a('''
    s_add_u32 %s, s9, %d
    s_and_b32 %s, %s, 0xffff
    s_add_u32 %s, %s, s10
''' % (soff(t), t * 4096, soff(t), soff(t), soff(t), soff(t)))

    ld = {}

    def load_k(t):
        for s in range(2):
            ld[('k', t)] = vm.issue('buffer_load_dwordx4 %s, v1, s[4:7], %s offen offset:%d' % (Kf(t, s), soff(t), 1024 * s))

    def load_v(t):
        for u in range(2):
            ld[('v', t)] = vm.issue('buffer_load_dwordx4 %s, v1, s[4:7], %s offen offset:%d' % (Vf(t, u), soff(t), 2048 + 1024 * u))

    wo_state = {'blk': -1}

    def load_wo(f):
        if (f >> 2) != wo_state['blk']:
            wo_state['blk'] = f >> 2
            a('s_mov_b32 s96, 0x%x' % (WS_WOF + (f >> 2) * 4096))
        ld[('w', f)] = vm.issue('buffer_load_dwordx4 %s, v2, s[4:7], s96 offen offset:%d' % (frag_reg(f), (f & 3) * 1024))

    def load_q(track):
        for b in range(4):
            a('''
    s_add_u32 s96, s3, %d
    s_and_b32 s96, s96, 3
    s_lshl_b32 s96, s96, 11
    s_add_u32 s96, s96, s97
''' % b)
            for s in range(2):
                t = 'buffer_load_dwordx4 %s, v1, s[4:7], s96 offen offset:%d' % (Qf(b, s), 1024 * s)
                if track:
                    ld[('q', b)] = vm.issue(t)
                else:
                    a(t)

    def zero_pads():
        a('s_mov_b32 exec_lo, 0')
        for b in range(4):
            a('v_mov_b32 v%d, 0' % (Q0 + 8 * b + 6))
            a('v_mov_b32 v%d, 0' % (Q0 + 8 * b + 7))
        a('s_mov_b64 exec, -1')

    a('''
k2_kernel:
    s_cmp_ge_u32 s2, %d
    s_cbranch_scc1 k2_end
''' % K2_GRID)
    st.real('start_real')
    st('start')
    a('''
    s_load_dwordx2 s[14:15], s[0:1], 96
    s_load_dwordx2 s[16:17], s[0:1], 0
    s_load_dwordx2 s[18:19], s[0:1], 48
    s_load_dwordx2 s[20:21], s[0:1], 80
    v_and_b32 v3, 63, v0
    v_lshrrev_b32 v4, 6, v0
    v_readfirstlane_b32 s3, v4
    v_lshlrev_b32 v1, 4, v3
    v_lshlrev_b32 v12, 3, v3
    s_mov_b32 s6, 0x10000000
    s_mov_b32 s7, 0x00020000
    s_mov_b32 s8, 0
    s_bfe_u32 s9, s2, 0x40003
    s_lshl_b32 s9, s9, 12
    s_lshl_b32 s10, s3, 16
    s_add_u32 s10, s10, %d
    s_mul_i32 s96, s3, 100352
    v_add_u32 v2, s96, v1
    s_lshl_b32 s97, s2, 13
    s_mov_b32 s22, 0x%x
    s_waitcnt lgkmcnt(0)
    s_mov_b32 s4, s14
    s_mov_b32 s5, s15
''' % (WS_KV, WS_KMAX))
    ld['kmax'] = vm.issue('buffer_load_dwordx2 v[14:15], v12, s[4:7], s22 offen')
    load_q(True)
    for t in (0, 1, 2):
        tile_off(t)
        load_k(t)
        load_v(t)
    a('''
    s_lshr_b32 s96, s2, 3
    s_lshl_b32 s96, s96, 2
    s_add_u32 s96, s96, s3
    s_mul_i32 s96, s96, 3136
    s_add_u32 s96, s96, %d
''' % WS_WOF)
    for i in range(4):
        vm.issue('buffer_load_dwordx4 %s, v1, s[4:7], s96 offen offset:%d' % (vr(FR0 + 4 * i, 4), 1024 * i))
    if EXPMODE == 'quad':
        a('''
    s_mov_b32 s26, 0x03ff03ff
    s_mov_b32 s27, 0x7c007c00
    v_mov_b32 v3, 0x38003800
''')
    else:
        a('''
    s_mov_b32 s26, 0x02000200
    s_mov_b32 s27, 0x3da83da8
''')
    a('''
    s_mov_b32 s23, 0xffff0000
    s_mov_b32 s24, 0x00ff00ff
    s_mov_b32 s25, 0x00ff00ff
    s_mov_b32 s28, 0x3f803f80
''')
    for g in (1, 2, 3):
        a('''
    s_add_u32 s96, s3, %d
    s_and_b32 s96, s96, 3
    s_mul_i32 s96, s96, 3
    s_add_u32 s96, s96, %d
    s_lshl_b32 s96, s96, 12
    v_add_u32 v%d, s96, v1
''' % (g, g - 1, 7 + g))
    a('''
    s_mul_i32 s96, s3, 12288
    v_add_u32 v11, s96, v1
    v_and_b32 v12, 7, v0
    v_mul_u32_u24 v4, %d, v12
    v_bfe_u32 v5, v0, 3, 2
    v_mul_u32_u24 v5, 56, v5
    v_bfe_u32 v6, v0, 5, 1
    v_lshl_add_u32 v5, v6, 3, v5
    s_mul_i32 s96, s3, 224
    v_bfe_u32 v7, v0, 4, 2
    v_lshl_add_u32 v6, v7, 4, v4
    v_add3_u32 v4, v4, v5, s96
    v_lshlrev_b32 v13, 4, v7
    v_add_u32 v13, %d, v13
    v_cndmask_b32 v5, v13, v6, s[24:25]
    v_cndmask_b32 v6, v6, v13, s[24:25]
    v_lshl_add_u32 v13, v7, 3, s96
    v_bfe_u32 v7, v0, 3, 1
    v_lshl_add_u32 v13, v7, 7, v13
    s_lshl_b32 s22, s2, 3
    v_add_u32 v12, s22, v12
    v_mul_u32_u24 v7, 0x380, v12
    v_add_u32 v7, v7, v13
''' % (OSTR, 8 * OSTR))
    a('''
    v_mov_b32 v%d, 0
    v_lshlrev_b32 v%d, 2, v0
    ds_write_b32 v%d, v%d offset:%d
''' % (S0, S0 + 1, S0 + 1, S0, L_O + 8 * OSTR))
    vm.wait(ld['kmax'])
    a('v_permlane32_swap_b32 v14, v15')
    a('v_max_f32 v14, v14, v15')
    allreduce16(a, 'v_max_f32', 'v14')
    xreduce16(a, 'v_max_f32', 'v14', 'v15')
    a('''
    v_readlane_b32 s29, v14, 0
    v_readlane_b32 s30, v14, 32
    s_cmp_lt_u32 s30, %s
    s_cselect_b32 s31, 1, 0
    s_cmp_gt_u32 s30, %s
    s_cselect_b32 s31, 1, s31
''' % (f32bits(2.0 ** -22), f32bits(2.0 ** 28)))
    vm.wait(ld[('q', 3)])
    st('q_arrived')
    zero_pads()
    N = P0
    for b in range(4):
        a('v_mov_b32 v%d, 0' % (N + b))
    for r in range(8):
        for b in range(4):
            a('v_dot2c_f32_bf16 v%d, v%d, v%d' % (N + b, Q0 + 8 * b + r, Q0 + 8 * b + r))
    for b in range(4):
        a('v_mov_b32 v%d, v%d' % (N + 4 + b, N + b))
    for b in range(4):
        a('v_permlane32_swap_b32 v%d, v%d' % (N + b, N + 4 + b))
    for b in range(4):
        a('v_add_f32 v%d, v%d, v%d' % (N + b, N + b, N + 4 + b))
    for b in range(4):
        a('v_mul_f32 v%d, s29, v%d' % (N + b, N + b))
    for b in range(4):
        a('v_sqrt_f32 v%d, v%d' % (N + b, N + b))
    a('v_mov_b32 v14, %s' % f32bits(28.5 * 1024 / 65535))
    a('s_mov_b32 exec_lo, 0')
    for b in range(4):
        a('v_fmamk_f32 v%d, v%d, %s, v14' % (N + b, N + b, f32bits(-1.01)))
    for b in range(4):
        a('v_cvt_pk_bf16_f32 v%d, v%d, 0' % (Q0 + 8 * b + 6, N + b))
    a('s_mov_b64 exec, -1')
    a('s_mov_b32 s29, %s' % f32bits(1.0 / 448))
    a('s_mov_b32 s30, 0x%x' % WS_CROW)

    seq = [(t, b) for t in range(14) for b in (1, 2, 3, 0)] + [(t, b) for b in (1, 2, 3, 0) for t in (14, 15)]
    last_t = {t: max(n for n in range(64) if seq[n][0] == t) for t in range(16)}
    last_b = {b: max(n for n in range(64) if seq[n][1] == b) for b in range(4)}

    vm.wait(ld[('k', 0)])
    st('k0_arrived')
    a('%s %s, %s, %s, 0' % (M32, vr(Sb(0), 16), Kf(0, 0), Qf(seq[0][1], 0)))
    a('%s %s, %s, %s, %s' % (M32, vr(Sb(0), 16), Kf(0, 1), Qf(seq[0][1], 1), vr(Sb(0), 16)))

    side = {}

    def at(n, g, fn):
        side.setdefault((n, g), []).append(fn)

    for t in range(3, 16):
        at(last_t[t - 3], 0, lambda t=t: (tile_off(t), load_k(t)))
        at(last_t[t - 3] + 1, 2, lambda t=t: load_v(t))
    pos = [(n, g) for n in range(WO_START, WO_END) for g in (1, 3)]
    for f in range(NIN):
        n, g = pos[(f * len(pos)) // NIN]
        at(n, g, lambda f=f: load_wo(f))
    for b in (1, 2, 3):
        n0 = last_b[b] + 1
        for q, (n, g) in enumerate(((n0, 3), (n0 + 1, 0), (n0 + 1, 1), (n0 + 1, 2))):
            at(n, g, lambda b=b, q=q: a('ds_write_b128 v%d, %s offset:%d' % (7 + b, vr(O0 + 16 * b + 4 * q, 4), q * 1024)))

    def group(n, g):
        s = Sb(n) + 4 * g
        p = P0 + 2 * g
        for fn in side.get((n, g), []):
            fn()
        for j in range(2):
            a('v_cvt_pknorm_u16_f32 v%d, v%d, v%d' % (T0 + j, s + 2 * j, s + 2 * j + 1))
        if EXPMODE == 'quad':
            for j in range(2):
                a('v_and_or_b32 v%d, v%d, s26, v3' % (T0 + 2 + j, T0 + j))
            for j in range(2):
                a('v_and_b32 v%d, s27, v%d' % (p + j, T0 + j))
            for j in range(2):
                a('v_pk_fmac_f16 v%d, v%d, v%d' % (p + j, T0 + j, T0 + 2 + j))
        else:
            for j in range(2):
                a('v_add_u32 v%d, s26, v%d' % (p + j, T0 + j))
            for j in range(2):
                a('v_pk_fmac_f16 v%d, s27, v%d' % (p + j, T0 + j))

    for n in range(64):
        t, b = seq[n]
        if n % 16 == 0 and n:
            st('slot%d' % n)
        if n + 1 < 64:
            t1, b1 = seq[n + 1]
            vm.wait(ld[('k', t1)])
            a('%s %s, %s, %s, 0' % (M32, vr(Sb(n + 1), 16), Kf(t1, 0), Qf(b1, 0)))
        group(n, 0)
        if n > 0:
            tm, bm = seq[n - 1]
            a('%s %s, %s, %s, %s' % (M32H, Ob(bm), Vf(tm, 1), vr(P0 + 4, 4), Ob(bm)))
        group(n, 1)
        if n + 1 < 64:
            a('%s %s, %s, %s, %s' % (M32, vr(Sb(n + 1), 16), Kf(t1, 1), Qf(b1, 1), vr(Sb(n + 1), 16)))
        group(n, 2)
        vm.wait(ld[('v', t)])
        a('%s %s, %s, %s, %s' % (M32H, Ob(b), Vf(t, 0), vr(P0, 4), '0' if t == 0 else Ob(b)))
        group(n, 3)
    a('%s %s, %s, %s, %s' % (M32H, Ob(0), Vf(15, 1), vr(P0 + 4, 4), Ob(0)))
    st('loop_end')
    D0, X, W = Q0, Q0 + 16, Q0 + 24
    HF = [72, 74, 76, 78, P0, P0 + 2, P0 + 4, P0 + 6]
    a('k2_comb:')
    wo_state['blk'] = -1
    a('''
    s_waitcnt lgkmcnt(0)
    s_barrier
''')
    for src in range(3):
        for q in range(4):
            a('ds_read_b128 %s, v11 offset:%d' % (vr(O0 + 16 * (src + 1) + 4 * q, 4), (src * 4 + q) * 1024))
    for r in (X + 6, X + 7, W + 6, W + 7):
        a('v_mov_b32 v%d, 0' % r)
    for j in range(3):
        vm.issue('global_load_dwordx2 %s, v7, s[16:17] offset:%d' % (vr(X + 2 * j, 2), 32 * j))
        vm.issue('global_load_dwordx2 %s, v13, s[18:19] offset:%d' % (vr(W + 2 * j, 2), 32 * j))
    a('s_mov_b64 exec, s[24:25]')
    vm.issue('global_load_dwordx2 %s, v7, s[16:17] offset:96' % vr(X + 6, 2))
    ld['xw'] = vm.issue('global_load_dwordx2 %s, v13, s[18:19] offset:96' % vr(W + 6, 2))
    a('s_mov_b64 exec, -1')
    late = list(range(NIN, 98))
    for src in range(3):
        a('s_waitcnt lgkmcnt(%d)' % (8 - 4 * src))
        for p in range(8):
            d = vr(O0 + 2 * p, 2)
            a('v_pk_add_f32 %s, %s, %s' % (d, d, vr(O0 + 16 * (src + 1) + 2 * p, 2)))
    a('''
    v_mov_b32 v14, v%d
    v_mov_b32 v15, v%d
    v_permlane32_swap_b32 v14, v15
    v_rcp_f32 v14, v15
    v_cmp_nle_f32 vcc, 0x42800000, v15
''' % (O0 + 12, O0 + 12))
    for p in range(8):
        d = vr(O0 + 2 * p, 2)
        a('v_pk_mul_f32 %s, %s, v[14:15] op_sel_hi:[1,0]' % (d, d))
    a('''
    s_cmp_lg_u64 vcc, 0
    s_cselect_b32 s96, 1, s31
    s_andn2_b32 s96, s96, s8
    s_lshl_b32 s22, s3, 2
''')
    for p in range(8):
        a('v_cvt_pk_bf16_f32 v%d, v%d, v%d' % (O0 + 16 + p, O0 + 2 * p, O0 + 2 * p + 1))
    a('v_mov_b32 v14, s96')
    a('v_mov_b32 v15, s22')
    for g in range(3):
        a('ds_write_b64 v4, %s offset:%d' % (vr(O0 + 16 + 2 * g, 2), L_O + 16 * g))
    a('''
    s_mov_b32 exec_hi, 0
    ds_write_b64 v4, %s offset:%d
    s_mov_b32 exec_lo, 1
    ds_write_b32 v15, v14 offset:%d
    s_mov_b64 exec, -1
    v_mov_b32 v15, 0
''' % (vr(O0 + 22, 2), L_O + 48, L_FL))
    for f in late[:6]:
        load_wo(f)
    a('''
    s_waitcnt lgkmcnt(0)
    s_barrier
    ds_read_b128 %s, v15 offset:%d
''' % (vr(72, 4), L_FL))
    B0 = O0
    st('combined')
    for ks in range(14):
        a('ds_read_b128 %s, v5 offset:%d' % (vr(B0 + 4 * ks, 4), L_O + 64 * ks))
    for f in late[6:10]:
        load_wo(f)
    a('''
    s_waitcnt lgkmcnt(14)
    v_or3_b32 v72, v72, v73, v74
    v_or_b32 v72, v72, v75
    v_readfirstlane_b32 s96, v72
    s_cmp_lg_u32 s96, 0
    s_cbranch_scc1 k2_slow
''')
    wo_state['blk'] = -1
    SA = [8, 9, 10, 11]
    fill = []

    def part_a(j):
        d = D0 + 4 * j
        o = []
        o.append('v_cvt_pk_bf16_f32 v14, v%d, v%d' % (d, d + 1))
        o.append('v_cvt_pk_bf16_f32 v15, v%d, v%d' % (d + 2, d + 3))
        o.append('v_lshlrev_b32 v%d, 16, v14' % d)
        o.append('v_and_b32 v%d, s23, v14' % (d + 1))
        o.append('v_lshlrev_b32 v%d, 16, v15' % (d + 2))
        o.append('v_and_b32 v%d, s23, v15' % (d + 3))
        for p in range(2):
            h = HF[2 * j + p]
            o.append('v_add_f32 v%d, v%d, v%d' % (h, h, d + 2 * p))
            o.append('v_add_f32 v%d, v%d, v%d' % (h + 1, h + 1, d + 2 * p + 1))
        for p in range(2):
            h = HF[2 * j + p]
            o.append('v_cvt_pk_bf16_f32 v%d, v%d, v%d' % (X + 2 * j + p, h, h + 1))
        for p in range(2):
            h, x = HF[2 * j + p], X + 2 * j + p
            o.append('v_dot2c_f32_bf16 v%d, s28, v%d' % (SA[0], x))
            o.append('v_dot2c_f32_bf16 v%d, v%d, v%d' % (SA[1], x, x))
            o.append('v_dot2c_f32_bf16 v%d, v%d, v%d' % (SA[2], x, W + 2 * j + p))
            o.append('v_lshlrev_b32 v%d, 16, v%d' % (h, x))
            o.append('v_and_b32 v%d, s23, v%d' % (h + 1, x))
        return o

    pre = ['v_mov_b32 v%d, 0' % r for r in SA]
    pre.append(('wait', 'xw'))
    for i in range(8):
        pre.append('v_lshlrev_b32 v%d, 16, v%d' % (HF[i], X + i))
        pre.append('v_and_b32 v%d, s23, v%d' % (HF[i] + 1, X + i))
        pre.append('v_dot2c_f32_bf16 v%d, s28, v%d' % (SA[3], W + i))
    late_rest = late[10:]

    def emit_fill(k):
        for _ in range(k):
            if fill:
                x = fill.pop(0)
                if isinstance(x, tuple):
                    vm.wait(ld[x[1]])
                else:
                    a(x)

    for tt in range(7):
        j = tt & 3
        if tt == 1:
            fill += pre
        for ks in range(14):
            f = 14 * tt + ks
            if tt in (0, 4):
                a('s_waitcnt lgkmcnt(%d)' % (13 - ks))
            vm.wait(ld[('w', f)])
            d = vr(D0 + 4 * j, 4)
            a('%s %s, %s, %s, %s' % (M16, d, frag_reg(f), vr(B0 + 4 * ks, 4), '0' if (ks == 0 and tt < 4) else d))
            if tt >= 4 and ks == 3:
                fill += part_a((tt - 1) & 3)
            if tt == 3:
                a('ds_read_b128 %s, v6 offset:%d' % (vr(B0 + 4 * ks, 4), L_O + 64 * ks))
            elif late_rest:
                load_wo(late_rest.pop(0))
            else:
                emit_fill(2)
    emit_fill(100)
    st('oproj')
    for x in part_a(2):
        a(x)
    a('''
    v_and_b32 v14, 7, v0
    v_lshlrev_b32 v14, 6, v14
    v_bfe_u32 v15, v0, 4, 2
    v_lshl_add_u32 v15, v15, 4, v14
    v_add_u32 v15, s22, v15
    v_permlane32_swap_b32 v%d, v%d
    v_permlane32_swap_b32 v%d, v%d
    v_add_f32 v%d, v%d, v%d
    v_add_f32 v%d, v%d, v%d
    v_permlane16_swap_b32 v%d, v%d
    v_add_f32 v%d, v%d, v%d
    v_add_f32_dpp v%d, v%d, v%d row_ror:8 row_mask:0xf bank_mask:0xf
    ds_write_b32 v15, v%d offset:%d
    v_mul_u32_u24 v15, 0x700, v12
    v_add3_u32 v15, v15, v13, %s
    s_waitcnt lgkmcnt(0)
    s_barrier
''' % (SA[0], SA[1], SA[2], SA[3], SA[0], SA[0], SA[1], SA[2], SA[2], SA[3], SA[0], SA[2],
       SA[0], SA[0], SA[2], SA[0], SA[0], SA[0], SA[0], L_ST, 's30'))
    R = 16
    for i in range(4):
        a('ds_read_b128 %s, v14 offset:%d' % (vr(R + 4 * i, 4), L_ST + 16 * i))
    st('stats_lds')
    a('''
    s_waitcnt lgkmcnt(3)
    v_pk_add_f32 v[16:17], v[16:17], v[18:19]
    v_add_f32 v16, v16, v17
    v_mul_f32 v16, %s, v16
    v_cvt_pk_bf16_f32 v8, v16, v16
    v_lshlrev_b32 v8, 16, v8
    s_waitcnt lgkmcnt(1)
    v_pk_add_f32 v[24:25], v[24:25], v[26:27]
    v_add_f32 v24, v24, v25
    v_mul_f32 v16, v16, v16
    v_fma_f32 v24, v24, %s, -v16
    v_max_f32 v24, 0, v24
    v_cvt_pk_bf16_f32 v24, v24, v24
    v_lshlrev_b32 v24, 16, v24
    v_add_f32 v24, %s, v24
    v_cvt_pk_bf16_f32 v24, v24, v24
    v_lshlrev_b32 v24, 16, v24
    v_sqrt_f32 v24, v24
''' % ('s29', 's29', f32bits(1e-5)))
    DF = [32 + 2 * i for i in range(8)]
    for i in range(8):
        a('v_pk_add_f32 %s, %s, v[8:9] op_sel_hi:[1,0] neg_lo:[0,1] neg_hi:[0,1]' % (vr(DF[i], 2), vr(HF[i], 2)))
    a('''
    v_cvt_pk_bf16_f32 v24, v24, v24
    v_lshlrev_b32 v24, 16, v24
    v_rcp_f32 v10, v24
''')
    for i in range(8):
        a('v_cvt_pk_bf16_f32 v%d, v%d, v%d' % (W + i, DF[i], DF[i] + 1))
    for i in range(8):
        a('v_lshlrev_b32 v%d, 16, v%d' % (DF[i], W + i))
        a('v_and_b32 v%d, s23, v%d' % (DF[i] + 1, W + i))
    for i in range(8):
        a('v_pk_mul_f32 %s, %s, v[10:11] op_sel_hi:[1,0]' % (vr(DF[i], 2), vr(DF[i], 2)))
    for i in range(8):
        a('v_cvt_pk_bf16_f32 v%d, v%d, v%d' % (W + i, DF[i], DF[i] + 1))
    OP = D0
    for j in range(4):
        for i in (2 * j, 2 * j + 1):
            a('v_lshlrev_b32 v%d, 16, v%d' % (DF[i], W + i))
            a('v_and_b32 v%d, s23, v%d' % (DF[i] + 1, W + i))
        for i in (2 * j, 2 * j + 1):
            a('v_pk_add_f32 %s, %s, %s' % (vr(DF[i], 2), vr(DF[i], 2), vr(HF[i], 2)))
        for i in (2 * j, 2 * j + 1):
            a('v_cvt_pk_bf16_f32 v%d, v%d, v%d' % (OP + i, DF[i], DF[i] + 1))
        if j == 3:
            a('s_mov_b64 exec, s[24:25]')
        a('global_store_dwordx2 v7, %s, s[20:21] offset:%d' % (vr(OP + 2 * j, 2), 32 * j))
    a('''
    s_mov_b64 exec, -1
    s_waitcnt lgkmcnt(0)
    v_pk_add_f32 v[20:21], v[20:21], v[22:23]
    v_pk_add_f32 v[28:29], v[28:29], v[30:31]
    v_add_f32 v20, v20, v21
    v_add_f32 v28, v28, v29
    v_fma_f32 v20, -v8, v28, v20
    v_mul_f32 v20, v20, v10
    v_and_b32 v20, 0xfffff800, v20
    v_or_b32 v20, v20, v12
    v_mov_b32_dpp v21, v20 row_ror:1 row_mask:0xf bank_mask:0xf
    v_max_f32 v24, v20, v21
    v_min_f32 v25, v20, v21
''')
    for r in (2, 4):
        a('''
    v_mov_b32_dpp v21, v24 row_ror:%d row_mask:0xf bank_mask:0xf
    v_max_f32_dpp v25, v25, v25 row_ror:%d row_mask:0xf bank_mask:0xf
    v_med3_f32 v25, v24, v21, v25
    v_max_f32 v24, v24, v21
''' % (r, r))
    a('''
    v_cmp_ge_f32 vcc, v20, v25
    s_lshl_b32 s96, s2, 3
    s_add_u32 s96, s96, %d
    v_mov_b32 v21, s96
    s_mov_b64 exec, vcc
    s_cbranch_execz k2_nocand
''' % WS_KEY)
    for j in range(4):
        if j == 3:
            a('s_and_b64 exec, exec, s[24:25]')
        a('global_store_dwordx2 v15, %s, s[14:15] offset:%d' % (vr(X + 2 * j, 2), 32 * j))
        a('global_store_dwordx2 v15, %s, s[14:15] offset:%d' % (vr(W + 2 * j, 2), 896 + 32 * j))
    a('''
k2_nocand:
    s_cmp_eq_u32 s3, 0
    s_cbranch_scc0 k2_fin
    s_mov_b64 exec, 1
    global_store_dwordx2 v21, v[24:25], s[14:15]
k2_fin:
''')
    st('stored')
    st.flush('s[14:15]', 's3')
    a('''
k2_end:
    s_endpgm
''')

    MX = T0
    a('''
k2_slow:
    s_waitcnt vmcnt(0) lgkmcnt(0)
    s_mov_b32 s8, -1
''')
    load_q(False)
    a('s_mov_b32 s96, 0')
    for b in range(4):
        a('v_mov_b32 v%d, 0xff800000' % (MX + b))
    a('s_waitcnt vmcnt(0)')
    zero_pads()
    a('''
k2_sl_max:
    s_add_u32 s11, s96, s10
    buffer_load_dwordx4 %s, v1, s[4:7], s11 offen
    buffer_load_dwordx4 %s, v1, s[4:7], s11 offen offset:1024
    s_waitcnt vmcnt(0)
''' % (Kf(0, 0), Kf(0, 1)))
    for b in range(4):
        s = Sb(b)
        a('%s %s, %s, %s, 0' % (M32, vr(s, 16), Kf(0, 0), Qf(b, 0)))
        a('%s %s, %s, %s, %s' % (M32, vr(s, 16), Kf(0, 1), Qf(b, 1), vr(s, 16)))
        for j in range(8):
            a('v_max3_f32 v%d, v%d, v%d, v%d' % (MX + b, MX + b, s + 2 * j, s + 2 * j + 1))
    a('''
    s_add_u32 s96, s96, 4096
    s_cmp_lt_u32 s96, 65536
    s_cbranch_scc1 k2_sl_max
    v_and_b32 v14, 31, v0
    v_lshlrev_b32 v14, 4, v14
''')
    for b in range(4):
        xreduce32(a, 'v_max_f32', 'v%d' % (MX + b), 'v15')
        a('''
    s_add_u32 s96, s3, %d
    s_and_b32 s96, s96, 3
    s_lshl_b32 s96, s96, 9
    v_add_u32 v%d, s96, v14
    v_add_u32 v15, s22, v%d
    ds_write_b32 v15, v%d offset:%d
''' % (b, P0 + b, P0 + b, MX + b, L_MX))
    a('''
    s_waitcnt lgkmcnt(0)
    s_barrier
''')
    for b in range(4):
        a('ds_read_b128 %s, v%d offset:%d' % (vr(S0 + 4 * b, 4), P0 + b, L_MX))
    a('''
    s_waitcnt lgkmcnt(0)
    s_mov_b32 s12, %s
''' % f32bits(65535.0 / 1024))
    for b in range(4):
        s = S0 + 4 * b
        a('''
    v_max3_f32 v%d, v%d, v%d, v%d
    v_max_f32 v%d, v%d, v%d
''' % (MX + b, s, s + 1, s + 2, MX + b, MX + b, s + 3))
    for r in range(64):
        a('v_mov_b32 v%d, 0' % (O0 + r))
    a('''
    s_mov_b32 s96, 0
k2_sl_pv:
    s_add_u32 s11, s96, s10
    s_sub_u32 s13, s11, %d
    s_lshr_b32 s13, s13, 1
    s_add_u32 s13, s13, %d
    buffer_load_dwordx4 %s, v1, s[4:7], s11 offen
    buffer_load_dwordx4 %s, v1, s[4:7], s11 offen offset:1024
    buffer_load_dwordx4 %s, v1, s[4:7], s13 offen
    buffer_load_dwordx4 %s, v1, s[4:7], s13 offen offset:1024
    s_waitcnt vmcnt(0)
''' % (WS_KV, WS_VB, Kf(0, 0), Kf(0, 1), Vf(0, 0), Vf(0, 1)))
    for b in range(4):
        s = Sb(b)
        a('%s %s, %s, %s, 0' % (M32, vr(s, 16), Kf(0, 0), Qf(b, 0)))
        a('%s %s, %s, %s, %s' % (M32, vr(s, 16), Kf(0, 1), Qf(b, 1), vr(s, 16)))
        for j in range(16):
            a('v_sub_f32 v%d, v%d, v%d' % (s + j, s + j, MX + b))
        for j in range(16):
            a('v_mul_f32 v%d, s12, v%d' % (s + j, s + j))
        for j in range(16):
            a('v_exp_f32 v%d, v%d' % (s + j, s + j))
        for j in range(8):
            a('v_cvt_pk_bf16_f32 v%d, v%d, v%d' % (P0 + j, s + 2 * j, s + 2 * j + 1))
        a('%s %s, %s, %s, %s' % (M32, Ob(b), Vf(0, 0), vr(P0, 4), Ob(b)))
        a('%s %s, %s, %s, %s' % (M32, Ob(b), Vf(0, 1), vr(P0 + 4, 4), Ob(b)))
    a('''
    s_add_u32 s96, s96, 4096
    s_cmp_lt_u32 s96, 65536
    s_cbranch_scc1 k2_sl_pv
''')
    for b in (1, 2, 3):
        for q in range(4):
            a('ds_write_b128 v%d, %s offset:%d' % (7 + b, vr(O0 + 16 * b + 4 * q, 4), q * 1024))
    a('s_branch k2_comb')
```
